```python
import torch

def _softmax(x, axis=-1):
    return torch.softmax(x, dim=axis)

def _gelu(x):
    return torch.nn.functional.gelu(x, approximate='tanh')

def _silu(x):
    return torch.nn.functional.silu(x)

def _sigmoid(x):
    return torch.sigmoid(x)

def _layernorm(x, axis=-1, eps=1e-05):
    m = x.mean(dim=axis, keepdim=True)
    v = x.var(dim=axis, keepdim=True, unbiased=False)
    return (x - m) / torch.sqrt(v + eps)

def _scatter_add(tgt, idx, src, axis=0):
    return tgt.clone().index_add_(axis, idx, src)

def _segment_sum(src, seg, n):
    out = torch.zeros((n,) + src.shape[1:], dtype=src.dtype)
    return out.index_add_(0, seg, src)

def _pad(x, pw):
    flat = tuple((v for pair in reversed(pw) for v in pair))
    return torch.nn.functional.pad(x, flat)
kernel_name = 'adaLN_cond__sliding_local_dilated__glu_gated_swiglu__prompt'

def setup_inputs():

    _w = lambda a: (lambda t: t.to(torch.bfloat16) if t.is_floating_point() else t)(torch.as_tensor(a))

    def _A_setup():
        B, S, D = (1, 2048, 1024)
        return {'x': _w((lambda *s: torch.randn(*s, dtype=torch.bfloat16) * 0.05)(B, S, D)), 'wqkv': _w((lambda *s: torch.randn(*s, dtype=torch.bfloat16) * 0.05)(D, 3 * D)), 'wo': _w((lambda *s: torch.randn(*s, dtype=torch.bfloat16) * 0.05)(D, D))}
    _A_in = _A_setup()

    def _B_setup():
        B, S, D, F = (1, 2048, 1024, 3584)
        return {'x': _w((lambda *s: torch.randn(*s, dtype=torch.bfloat16) * 0.05)(B, S, D)), 'w1': _w((lambda *s: torch.randn(*s, dtype=torch.bfloat16) * 0.8)(D, F) * (2.0 / D) ** 0.5), 'w3': _w((lambda *s: torch.randn(*s, dtype=torch.bfloat16) * 0.8)(D, F) * (2.0 / D) ** 0.5), 'w2': _w((lambda *s: torch.randn(*s, dtype=torch.bfloat16) * 0.8)(F, D) * (2.0 / F) ** 0.5)}
    _B_in = _B_setup()
    return {'A_x': _A_in['x'], 'A_wqkv': _A_in['wqkv'], 'A_wo': _A_in['wo'], 'B_x': _B_in['x'], 'B_w1': _B_in['w1'], 'B_w3': _B_in['w3'], 'B_w2': _B_in['w2'], 'c': _w((lambda *s: torch.randn(*s, dtype=torch.bfloat16) * 0.1)(1, 1024) * 8.0), 'w_mod': _w((lambda *s: torch.randn(*s, dtype=torch.bfloat16) * 0.1)(1024, 6 * 1024) * 1024 ** (-0.5) * 8.0)}

def reference(A_x, A_wqkv, A_wo, B_x, B_w1, B_w3, B_w2, c, w_mod):

    def _A_ref(x, wqkv, wo):
        B, S, D = x.shape
        H = 32
        Dh = D // H
        W, dil = (8, 2)
        qkv = (lambda x, *d: x.permute(*d))((x @ wqkv).reshape(B, S, 3, H, Dh), 2, 0, 3, 1, 4)
        q, k, v = (qkv[0], qkv[1], qkv[2])
        scale = Dh ** (-0.5)
        pos = torch.arange(S)
        off = torch.arange(W) * dil
        idx = pos[:, None] - off[None, :]
        mask = idx >= 0
        idx_c = torch.where(mask, idx, 0).reshape(-1)
        kg = k[:, :, idx_c, :].reshape(B, H, S, W, Dh)
        vg = v[:, :, idx_c, :].reshape(B, H, S, W, Dh)
        logits = torch.einsum('bhsd,bhswd->bhsw', q, kg) * scale
        logits = torch.where(mask[None, None, :, :], logits, -1000000000.0)
        attn = _softmax(logits, axis=-1)
        o = torch.einsum('bhsw,bhswd->bhsd', attn, vg)
        return (lambda x, *d: x.permute(*d))(o, 0, 2, 1, 3).reshape(B, S, D) @ wo

    def _B_ref(x, w1, w3, w2):
        gate = torch.einsum('bsd,df->bsf', x, w1)
        up = torch.einsum('bsd,df->bsf', x, w3)
        h = _silu(gate) * up
        out = torch.einsum('bsf,fd->bsd', h, w2)
        return out
    x = A_x
    mod = (_silu(c) @ w_mod).reshape(c.shape[0], 6, 1, -1)
    sa, ca, ga, sb, cb, gb = (mod[:, 0].clone(), mod[:, 1].clone(), mod[:, 2].clone(), mod[:, 3].clone(), mod[:, 4].clone(), mod[:, 5].clone())
    h = _layernorm(x, axis=-1) * (1 + ca) + sa
    x = x + ga * _A_ref(h, A_wqkv, A_wo)
    h = _layernorm(x, axis=-1) * (1 + cb) + sb
    x = x + gb * _B_ref(h, B_w1, B_w3, B_w2)
    return x
```

```python
import re

TRANS = {"v_exp_f32", "v_log_f32", "v_rcp_f32", "v_rsq_f32", "v_sqrt_f32", "v_sin_f32", "v_cos_f32"}
_REG1 = re.compile(r"^([vsa])(\d+)$")
_REGN = re.compile(r"^([vsa])\[(\d+):(\d+)\]$")


def parse_reg(tok):
    t = tok.strip()
    t = t.lstrip("-")
    if t.startswith("abs(") and t.endswith(")"):
        t = t[4:-1]
    if t.startswith("|") and t.endswith("|"):
        t = t[1:-1]
    m = _REG1.match(t)
    if m:
        return {(m.group(1), int(m.group(2)))}
    m = _REGN.match(t)
    if m:
        return {(m.group(1), i) for i in range(int(m.group(2)), int(m.group(3)) + 1)}
    if t == "vcc":
        return {("s", 106), ("s", 107)}
    if t == "vcc_lo":
        return {("s", 106)}
    if t == "vcc_hi":
        return {("s", 107)}
    if t == "exec":
        return {("x", 0)}
    if t == "m0":
        return {("m", 0)}
    return set()


def split_ops(s):
    out, depth, cur = [], 0, ""
    for ch in s:
        if ch in "[(":
            depth += 1
        elif ch in "])":
            depth -= 1
        if ch == "," and depth == 0:
            out.append(cur.strip())
            cur = ""
        else:
            cur += ch
    if cur.strip():
        out.append(cur.strip())
    return out


class Ins:
    __slots__ = ("text", "kind", "dst", "src", "srcA", "srcB", "srcC", "passes", "trans", "dpp",
                 "perm", "rdlane", "wide_data", "ldsdma", "states", "mn", "sdst_valu")

    def __init__(self, text):
        self.text = text
        body = text.split(";")[0].strip()
        parts = body.split(None, 1)
        mn = parts[0]
        self.mn = mn
        rest = parts[1] if len(parts) > 1 else ""
        ops = split_ops(rest)
        mods = []
        if ops:
            lt = ops[-1].split()
            if len(lt) > 1:
                ops[-1] = lt[0]
                mods = lt[1:]
        self.kind = "other"
        self.dst = set()
        self.src = set()
        self.srcA = self.srcB = self.srcC = set()
        self.passes = 0
        self.trans = False
        self.dpp = False
        self.perm = False
        self.rdlane = False
        self.wide_data = set()
        self.ldsdma = False
        self.states = 1
        self.sdst_valu = set()
        R = [parse_reg(o) for o in ops]
        base = mn.replace("_e32", "").replace("_e64", "").replace("_dpp", "")
        if mn.startswith("v_mfma"):
            self.kind = "mfma"
            self.dst = R[0]
            self.srcA, self.srcB, self.srcC = R[1], R[2], R[3]
            self.src = R[1] | R[2] | R[3]
            self.passes = 8 if "32x32x16" in mn else 4
        elif mn.startswith("v_"):
            self.kind = "valu"
            if base.startswith("v_permlane") and "swap" in base:
                self.dst = R[0] | R[1]
                self.src = R[0] | R[1]
                self.perm = True
            elif base in ("v_add_co_u32", "v_sub_co_u32", "v_addc_co_u32", "v_subb_co_u32"):
                self.dst = R[0] | R[1]
                for r in R[2:]:
                    self.src |= r
            else:
                self.dst = R[0]
                for r in R[1:]:
                    self.src |= r
                if base in ("v_fmac_f32", "v_dot2c_f32_bf16", "v_writelane_b32"):
                    self.src |= R[0]
            if base in ("v_readfirstlane_b32", "v_readlane_b32"):
                self.rdlane = True
            self.trans = base in TRANS
            self.dpp = any(m.startswith(("quad_perm", "row_", "wave_")) for m in mods) or mn.endswith("_dpp")
            self.sdst_valu = {r for r in self.dst if r[0] == "s"}
        elif mn.startswith("s_"):
            self.kind = "salu"
            if mn == "s_nop":
                self.states = int(ops[0], 0) + 1
            elif mn.startswith(("s_cmp", "s_waitcnt", "s_barrier", "s_branch", "s_cbranch", "s_setprio",
                                "s_endpgm", "s_sleep")):
                for r in R:
                    self.src |= r
            elif mn.startswith(("s_load", "s_buffer_load")):
                self.kind = "smem"
                self.dst = R[0]
                for r in R[1:]:
                    self.src |= r
            else:
                self.dst = R[0] if R else set()
                for r in R[1:]:
                    self.src |= r
                if "saveexec" in mn:
                    self.dst = self.dst | {("x", 0)}
        elif mn.startswith(("buffer_", "global_")):
            self.kind = "vmem"
            lds = "lds" in mods or "_lds_" in mn
            if "load" in mn and not lds:
                self.dst = R[0]
                for r in R[1:]:
                    self.src |= r
            else:
                for r in R:
                    self.src |= r
                if lds:
                    self.ldsdma = True
                    self.src |= {("m", 0)}
                elif "store" in mn and ("x4" in mn or "x3" in mn):
                    self.wide_data = R[0] if mn.startswith("buffer_") else R[1]
        elif mn.startswith("ds_"):
            self.kind = "ds"
            if mn.startswith(("ds_read", "ds_bpermute", "ds_permute", "ds_swizzle")) or "_rtn_" in mn:
                self.dst = R[0]
                for r in R[1:]:
                    self.src |= r
            else:
                for r in R:
                    self.src |= r
        else:
            raise ValueError("unknown instruction: " + text)


def need_states(p, c):
    n = 0
    vdst_p = {r for r in p.dst if r[0] in "va"}
    if p.kind == "valu":
        if c.kind == "mfma" and (vdst_p & c.src):
            n = max(n, 2)
        if c.kind == "valu":
            if c.dpp and (vdst_p & c.src):
                n = max(n, 2)
            if c.perm and (vdst_p & c.src):
                n = max(n, 2)
            if c.rdlane and (vdst_p & c.src):
                n = max(n, 1)
            if p.trans and not c.trans and (vdst_p & (c.src | c.dst)):
                n = max(n, 1)
            if p.sdst_valu & c.src:
                n = max(n, 4 if c.rdlane else 2)
        if p.mn.startswith("v_dot") and (vdst_p & (c.src | c.dst)) and c.kind in ("valu", "vmem", "ds", "mfma"):
            n = max(n, 3)
        if c.kind == "vmem" and (p.sdst_valu & c.src):
            n = max(n, 5)
        if c.kind in ("salu", "smem") and (p.sdst_valu & c.src):
            n = max(n, 4)
    if p.kind == "mfma":
        big = {4: 8, 8: 12}[p.passes]
        if c.kind == "mfma":
            if p.dst & (c.srcA | c.srcB):
                n = max(n, big)
            if p.dst & c.srcC:
                if not (p.dst == c.srcC and p.passes == c.passes):
                    n = max(n, {4: 6, 8: 10}[p.passes])
            elif p.dst & c.dst:
                n = max(n, big)
        elif c.kind in ("valu", "vmem", "ds"):
            if p.dst & (c.src | c.dst):
                n = max(n, big)
        if c.kind == "valu" and (p.srcC & c.dst):
            n = max(n, {4: 3, 8: 7}[p.passes])
    if p.kind == "salu" and (("m", 0) in p.dst) and c.ldsdma:
        n = max(n, 1)
    if p.kind == "vmem" and p.wide_data:
        if p.wide_data & c.dst:
            n = max(n, 2)
    return n


class Asm:
    def __init__(self):
        self.lines = []
        self.hist = []
        self.nops = 0

    def raw(self, s):
        self.lines.append(s)

    def comment(self, s):
        self.lines.append("    ; " + s)

    def _pad_for(self, ins):
        need = 0
        dist = 0
        for p in reversed(self.hist):
            k = need_states(p, ins) - dist
            if k > need:
                need = k
            dist += p.states
            if dist > 24:
                break
        return need

    def op(self, text):
        ins = Ins(text)
        need = self._pad_for(ins)
        while need > 0:
            k = min(need, 16)
            nop = Ins("s_nop %d" % (k - 1))
            self.lines.append("    s_nop %d" % (k - 1))
            self.hist.append(nop)
            self.nops += 1
            need -= k
        self.lines.append("    " + text)
        self.hist.append(ins)
        if len(self.hist) > 64:
            self.hist = self.hist[-40:]
        return ins

    def ops(self, text):
        for l in text.strip().splitlines():
            l = l.strip()
            if l and not l.startswith(";"):
                self.op(l)

    def label(self, name):
        self.lines.append(name + ":")

    def flush(self, n=20):
        self.op("s_nop 15")
        self.op("s_nop 3")

    def mark(self):
        return len(self.lines)

    def check_loop(self, start_mark):
        body = [l.strip() for l in self.lines[start_mark:] if l.startswith("    ") and not l.strip().startswith(";")]
        sim = Asm()
        for l in body:
            sim.hist.append(Ins(l))
        sim.hist = sim.hist[-40:]
        for l in body[:40]:
            ins = Ins(l)
            need = sim._pad_for(ins)
            assert need == 0, "loop back-edge hazard at: %s (need %d)" % (l, need)
            sim.hist.append(ins)

    def text(self):
        return "\n".join(self.lines) + "\n"
```

```python
from asmlib import Asm


def is_vmem(t):
    return t.startswith(("buffer_", "global_"))


class Stream:
    def __init__(self, name, s_cnt):
        self.e = []
        self.name = name
        self.s_cnt = s_cnt
        self.dyn = {}
        self.dyn_wait = {}

    def op(self, t, tag=None):
        self.e.append(ent(t, tag))

    def add(self, items):
        for x in items:
            if isinstance(x, str):
                self.op(x)
            elif isinstance(x, list):
                self.add(x)
            else:
                self.e.append(x)

    def wait(self, *tags):
        self.e.append(("w", tags))

    def cut(self, region=None):
        self.e.append(("cut", region))

    def label(self, l):
        self.e.append(("l", l))

    def nbar(self):
        return sum(1 for x in self.e if x[0] == "i" and x[1] == "s_barrier")

    def resolve(self):
        vm = []
        done = -1
        out = []
        for x in self.e:
            if x[0] == "v":
                vm.append(x[2])
                out.append(("i", x[1]))
            elif x[0] == "w":
                last = -1
                for i, t in enumerate(vm):
                    if t in x[1] or "*" in x[1]:
                        last = i
                if last > done:
                    n = min(63, len(vm) - 1 - last)
                    done = len(vm) - 1 - n
                    out.append(("i", "s_waitcnt vmcnt(%d)" % n))
            else:
                out.append(x)
        return out

    def emit(self, A):
        parts = [[None, []]]
        for x in self.resolve():
            if x[0] == "cut":
                parts.append([x[1], []])
            else:
                parts[-1][1].append(x)
        n = len(parts)
        runs = []
        s = 0
        while s < n:
            r = s
            while r + 1 < n and parts[r + 1] == parts[s] and not any(k != "i" for k, _ in parts[s][1]):
                r += 1
            runs.append((s, r - s + 1))
            s = r + 1
        best = {}
        for (s, c) in runs:
            reg = parts[s][0]
            if reg in self.dyn_wait and ("i", "s_waitcnt vmcnt(%d)" % self.dyn_wait[reg]) not in parts[s][1]:
                continue
            if reg in self.dyn and reg not in self.dyn_wait and any(is_vmem(t) or "vmcnt" in t for _, t in parts[s][1]):
                continue
            if reg in self.dyn and (reg not in best or c > best[reg][1]):
                best[reg] = (s, c)
        for reg in self.dyn:
            assert reg in best and best[reg][1] >= 2, "no steady loop for region %s: %s" % (reg, best.get(reg))
        nl = 0
        for (s, c) in runs:
            reg, body = parts[s]
            if c < 2 or not body:
                for _ in range(c):
                    for k, t in body:
                        if k == "i":
                            A.op(t)
                        elif k == "l":
                            A.label(t)
                        else:
                            A.raw(t)
                continue
            lab = "%s_loop%d" % (self.name, nl)
            nl += 1
            cnt = "s%d" % self.s_cnt
            if best.get(reg) == (s, c):
                assert sum(1 for _, t in body if t == "s_barrier") == 1
                A.op("s_add_u32 %s, s%d, %d" % (cnt, self.dyn[reg], c - 1))
            else:
                A.op("s_movk_i32 %s, %d" % (cnt, c - 1))
            txt = [t for _, t in body]
            k = len(txt)
            mf = [i for i, t in enumerate(txt) if t.startswith("v_mfma")]
            if len(mf) >= 2:
                k2 = mf[-2] + 1
                if not any(t.startswith("s_") and not t.startswith(("s_waitcnt", "s_barrier", "s_nop", "s_setprio", "s_mov"))
                           for t in txt[k2:]):
                    k = k2
            txt = txt[:k] + ["s_sub_u32 %s, %s, 1" % (cnt, cnt)] + txt[k:]
            A.label(lab)
            mk = A.mark()
            for t in txt:
                A.op(t)
            A.op("s_cbranch_scc0 %s" % lab)
            A.check_loop(mk)


def ent(t, tag=None):
    if is_vmem(t):
        return ("v", t, tag)
    return ("i", t)


def merge(a, b):
    out = []
    na, nb = len(a), len(b)
    if na == 0:
        return list(b)
    j = 0
    for i, g in enumerate(a):
        out.append(g)
        k = (i + 1) * nb // na
        out += b[j:k]
        j = k
    return out
```

```python
import os
import struct
import sys

sys.path.insert(0, os.path.dirname(os.path.abspath(__file__)))
from asmlib import Asm

NAME = "adaLN_cond__sliding_local_dilated__glu_gated_swiglu__prompt"
S, D, F = 2048, 1024, 3584
MB = 1 << 20
WSB = int(os.environ.get("WSB", "0")) * MB
WS_MOD = WSB + 0
WS_P1 = WSB + 64 * 1024
WS_P2 = WSB + 128 * 1024
WS_ST1 = WSB + 256 * 1024
WS_FLAG = WSB + 320 * 1024
WS_PART = WSB + int(os.environ.get("PARTOFF", "1")) * MB
WS_ST2 = WSB + 384 * 1024
WS_UB = WSB + 896 * 1024
F2 = int(os.environ.get("F2", "0"))
WS_H1 = WSB + 1 * MB
WS_O = WSB + 6 * MB
WS_X1 = WSB + 11 * MB
WS_H2 = WSB + int(os.environ.get("H2OFF", "16")) * MB
WS_HH = WSB + 21 * MB
ACT_BYTES = S * D * 2
XS = 2048 + int(os.environ.get("PADX", "128"))
HS = 7168 + int(os.environ.get("PADH", "128"))
XP_BYTES = S * XS
HH_BYTES = S * HS
QKV_BYTES = D * 3 * D * 2
WO_BYTES = D * D * 2
FF_BYTES = D * F * 2
WMOD_BYTES = D * 6 * D * 2

KA_X, KA_WQKV, KA_WO, KA_W1, KA_W3, KA_W2, KA_C, KA_WMOD, KA_OUT, KA_DBG, KA_WS = \
    0, 8, 16, 32, 40, 48, 56, 64, 72, 80, 88

DBG = os.environ.get("DBG", "").split(",")
KERNELS = []


def opt(name, default):
    return type(default)(os.environ.get(name, default))


def f32hex(x):
    return "0x%08x" % struct.unpack("<I", struct.pack("<f", x))[0]


class Regs:
    def __init__(self, start=0, limit=256):
        self.n = start
        self.limit = limit

    def get(self, cnt=1, align=1):
        self.n = (self.n + align - 1) // align * align
        b = self.n
        self.n += cnt
        assert self.n <= self.limit, "out of registers"
        return b


class Rec:
    def __init__(self):
        self.l = []

    def op(self, t):
        self.l.append(t)

    def groups(self, n=3):
        return [self.l[i:i + n] for i in range(0, len(self.l), n)]


def vr(b, n=1):
    return "v%d" % b if n == 1 else "v[%d:%d]" % (b, b + n - 1)


def sr(b, n=1):
    return "s%d" % b if n == 1 else "s[%d:%d]" % (b, b + n - 1)


def srd(A, d, lo, off, size):
    if off:
        A.op("s_add_u32 s%d, s%d, 0x%x" % (d, lo, off))
        A.op("s_addc_u32 s%d, s%d, 0" % (d + 1, lo + 1))
    else:
        A.op("s_mov_b32 s%d, s%d" % (d, lo))
        A.op("s_mov_b32 s%d, s%d" % (d + 1, lo + 1))
    A.op("s_mov_b32 s%d, 0x%x" % (d + 2, size))
    A.op("s_mov_b32 s%d, 0x20000" % (d + 3))


def rnd2(A, a, b, tmp):
    A.op("v_cvt_pk_bf16_f32 %s, %s, %s" % (vr(tmp), vr(a), vr(b)))
    A.op("v_lshlrev_b32 %s, 16, %s" % (vr(a), vr(tmp)))
    A.op("v_and_b32 %s, 0xffff0000, %s" % (vr(b), vr(tmp)))


def rnd1(A, a, tmp):
    A.op("v_cvt_pk_bf16_f32 %s, %s, %s" % (vr(tmp), vr(a), vr(a)))
    A.op("v_lshlrev_b32 %s, 16, %s" % (vr(a), vr(tmp)))


def unpack(A, lo, hi, src):
    A.op("v_lshlrev_b32 %s, 16, %s" % (vr(lo), vr(src)))
    A.op("v_and_b32 %s, 0xffff0000, %s" % (vr(hi), vr(src)))


def xgroup_reduce(A, v, t, opn):
    A.op("v_mov_b32 %s, %s" % (vr(t), vr(v)))
    A.op("v_permlane32_swap_b32 %s, %s" % (vr(v), vr(t)))
    A.op("%s %s, %s, %s" % (opn, vr(v), vr(v), vr(t)))
    A.op("v_mov_b32 %s, %s" % (vr(t), vr(v)))
    A.op("v_permlane16_swap_b32 %s, %s" % (vr(v), vr(t)))
    A.op("%s %s, %s, %s" % (opn, vr(v), vr(v), vr(t)))


def xgroup_reduce_n(A, vs, ts, opn):
    for v, t in zip(vs, ts):
        A.op("v_mov_b32 %s, %s" % (vr(t), vr(v)))
    for v, t in zip(vs, ts):
        A.op("v_permlane32_swap_b32 %s, %s" % (vr(v), vr(t)))
    for v, t in zip(vs, ts):
        A.op("%s %s, %s, %s" % (opn, vr(v), vr(v), vr(t)))
    for v, t in zip(vs, ts):
        A.op("v_mov_b32 %s, %s" % (vr(t), vr(v)))
    for v, t in zip(vs, ts):
        A.op("v_permlane16_swap_b32 %s, %s" % (vr(v), vr(t)))
    for v, t in zip(vs, ts):
        A.op("%s %s, %s, %s" % (opn, vr(v), vr(v), vr(t)))


DPP = " row_mask:0xf bank_mask:0xf"


def wave_sum_n(A, vs, ts):
    for ctl in ("quad_perm:[1,0,3,2]", "quad_perm:[2,3,0,1]", "row_half_mirror", "row_mirror"):
        for v in vs:
            A.op("v_add_f32_dpp %s, %s, %s %s%s" % (vr(v), vr(v), vr(v), ctl, DPP))
    xgroup_reduce_n(A, vs, ts, "v_add_f32")


def silu_bf16_n(A, vs, ts):
    for v, t in zip(vs, ts):
        A.op("v_lshlrev_b32 %s, 16, %s" % (vr(v), vr(v)))
    for v, t in zip(vs, ts):
        A.op("v_mul_f32 %s, 0xbfb8aa3b, %s" % (vr(t), vr(v)))
    for v, t in zip(vs, ts):
        A.op("v_exp_f32 %s, %s" % (vr(t), vr(t)))
    for v, t in zip(vs, ts):
        A.op("v_add_f32 %s, 1.0, %s" % (vr(t), vr(t)))
    for v, t in zip(vs, ts):
        A.op("v_rcp_f32 %s, %s" % (vr(t), vr(t)))
    for v, t in zip(vs, ts):
        A.op("v_mul_f32 %s, %s, %s" % (vr(v), vr(v), vr(t)))
    for v, t in zip(vs, ts):
        rnd1(A, v, t)


def prefetch(A, s_ptr, start, end, cover, v_off, vdst, s_srd, s_tmp):
    if "nopf" in DBG:
        return 0
    srd(A, s_srd, s_ptr, 0, end)
    cnt = 0
    for o in range(start, end, cover):
        A.op("s_mov_b32 %s, 0x%x" % (sr(s_tmp), o))
        A.op("buffer_load_dword %s, %s, %s, %s offen" % (vr(vdst), vr(v_off), sr(s_srd, 4), sr(s_tmp)))
        cnt += 1
    return cnt


def stamp(A, idx):
    if "stamp" in DBG:
        A.op("s_memtime s[%d:%d]" % (86 + 4 * idx, 87 + 4 * idx))
        A.op("s_memrealtime s[%d:%d]" % (88 + 4 * idx, 89 + 4 * idx))


def begin_kernel(A, label, nwg):
    A.raw(".globl %s" % label)
    A.raw(".p2align 8")
    A.raw(".type %s,@function" % label)
    A.label(label)
    A.hist = []
    stamp(A, 0)
    A.op("s_cmp_ge_u32 s2, %d" % nwg)
    A.op("s_cbranch_scc1 %s_end" % label)


def end_kernel(A, L, nwg, nthr, lds, nv, ns):
    if "stamp" in DBG:
        kidx = len(KERNELS)
        A.op("s_mov_b64 exec, -1")
        A.op("s_waitcnt vmcnt(0)")
        A.op("s_barrier")
        stamp(A, 3)
        A.op("s_load_dwordx2 s[4:5], s[0:1], %d" % KA_WS)
        A.op("s_waitcnt lgkmcnt(0)")
        srd(A, 8, 4, 64 * MB + kidx * 65536, 65536)
        A.op("s_lshl_b32 s3, s2, 6")
        A.op("v_cmp_eq_u32 vcc, 0, v0")
        A.op("s_and_saveexec_b64 s[6:7], vcc")
        A.op("s_cbranch_execz %s_end" % L)
        A.op("v_mov_b32 v1, s3")
        for i in range(16):
            A.op("v_mov_b32 v2, s%d" % (86 + i))
            A.op("buffer_store_dword v2, v1, s[8:11], 0 offen offset:%d" % (4 * i))
        ns = 102
    A.label(L + "_end")
    A.op("s_endpgm")
    KERNELS.append((L, nwg, nthr, lds, nv, ns))


def gemv_addr(A, nthr, s_row0, s_colbyte, vgw, vgc, vt, s_t, vtid=0):
    A.op("v_lshrrev_b32 %s, 3, %s" % (vr(vt), vr(vtid)))
    A.op("v_add_u32 %s, %s, %s" % (vr(vt), sr(s_row0), vr(vt)))
    A.op("v_lshlrev_b32 %s, 1, %s" % (vr(vgc), vr(vt)))
    A.op("s_movk_i32 %s, 12288" % sr(s_t))
    A.op("v_mul_lo_u32 %s, %s, %s" % (vr(vt), sr(s_t), vr(vt)))
    A.op("v_and_b32 %s, 7, v0" % vr(vgw))
    A.op("v_lshl_add_u32 %s, %s, 4, %s" % (vr(vt), vr(vgw), vr(vt)))
    A.op("v_add_u32 %s, %s, %s" % (vr(vgw), sr(s_colbyte), vr(vt)))


def gemv_issue(A, nthr, NR, sC, sWm, vC, vWd, vgw, vgc, s_t):
    rg = nthr // 8
    for i in range(NR):
        A.op("buffer_load_ushort %s, %s, %s, 0 offen offset:%d" % (vr(vC + i), vr(vgc), sr(sC, 4), 2 * rg * i))
    for i in range(NR):
        A.op("s_mov_b32 %s, 0x%x" % (sr(s_t), i * rg * 12288))
        A.op("buffer_load_dwordx4 %s, %s, %s, %s offen" % (vr(vWd + 4 * i, 4), vr(vgw), sr(sWm, 4), sr(s_t)))
    return 2 * NR


def gemv_finish(A, nthr, NR, after, vC, vWd, vacc, vt, lds_off, sP, s_outbyte, s_ex, L):
    nw = nthr // 64
    A.op("s_waitcnt vmcnt(%d)" % (after + NR))
    silu_bf16_n(A, [vC + i for i in range(NR)], [vt + i for i in range(NR)])
    for i in range(NR):
        A.op("s_waitcnt vmcnt(%d)" % (after + NR - 1 - i))
        for d in range(4):
            unpack(A, vt + 2 * d, vt + 2 * d + 1, vWd + 4 * i + d)
        for x in range(8):
            if i == 0:
                A.op("v_mul_f32 %s, %s, %s" % (vr(vacc + x), vr(vC + i), vr(vt + x)))
            else:
                A.op("v_fmac_f32 %s, %s, %s" % (vr(vacc + x), vr(vC + i), vr(vt + x)))
    for j in range(8):
        A.op("v_add_f32_dpp %s, %s, %s row_ror:8%s" % (vr(vacc + j), vr(vacc + j), vr(vacc + j), DPP))
    xgroup_reduce_n(A, [vacc + j for j in range(8)], [vt + j for j in range(8)], "v_add_f32")
    A.op("v_lshrrev_b32 %s, 6, v0" % vr(vt))
    A.op("v_lshlrev_b32 %s, 8, %s" % (vr(vt), vr(vt)))
    A.op("v_and_b32 %s, 7, v0" % vr(vt + 1))
    A.op("v_lshl_add_u32 %s, %s, 5, %s" % (vr(vt), vr(vt + 1), vr(vt)))
    if lds_off > 60000:
        A.op("v_add_u32 %s, %d, %s" % (vr(vt), lds_off, vr(vt)))
        lo = 0
    else:
        lo = lds_off
    A.op("ds_write_b128 %s, %s offset:%d" % (vr(vt), vr(vacc, 4), lo))
    A.op("ds_write_b128 %s, %s offset:%d" % (vr(vt), vr(vacc + 4, 4), lo + 16))
    A.op("v_and_b32 %s, 63, v0" % vr(vt + 1))
    A.op("v_lshlrev_b32 %s, 2, %s" % (vr(vt + 1), vr(vt + 1)))
    A.op("v_add_u32 %s, %d, %s" % (vr(vt + 2), lds_off - lo, vr(vt + 1)))
    A.op("s_waitcnt lgkmcnt(0)")
    A.op("s_barrier")
    A.op("v_cmp_gt_u32 vcc, 64, v0")
    A.op("s_and_saveexec_b64 %s, vcc" % sr(s_ex, 2))
    A.op("s_cbranch_execz %s_gskip" % L)
    for w in range(nw):
        A.op("ds_read_b32 %s, %s offset:%d" % (vr(vacc + w), vr(vt + 2), lo + 256 * w))
    A.op("s_waitcnt lgkmcnt(0)")
    st = 1
    while st < nw:
        for w in range(0, nw, 2 * st):
            A.op("v_add_f32 %s, %s, %s" % (vr(vacc + w), vr(vacc + w), vr(vacc + w + st)))
        st *= 2
    A.op("buffer_store_dword %s, %s, %s, %s offen" % (vr(vacc), vr(vt + 1), sr(sP, 4), sr(s_outbyte)))
    A.label(L + "_gskip")
    A.op("s_mov_b64 exec, -1")


def row_stats_n(A, xrs, Xs, ts):
    for xr, X in zip(xrs, Xs):
        for d in range(8):
            unpack(A, X + 2 * d, X + 2 * d + 1, xr + d)
    for X, t in zip(Xs, ts):
        A.op("v_add_f32 %s, %s, %s" % (vr(t), vr(X), vr(X + 1)))
        A.op("v_add_f32 %s, %s, %s" % (vr(t + 1), vr(X + 2), vr(X + 3)))
    for j in range(4, 16, 2):
        for X, t in zip(Xs, ts):
            A.op("v_add_f32 %s, %s, %s" % (vr(t), vr(t), vr(X + j)))
            A.op("v_add_f32 %s, %s, %s" % (vr(t + 1), vr(t + 1), vr(X + j + 1)))
    for t in ts:
        A.op("v_add_f32 %s, %s, %s" % (vr(t), vr(t), vr(t + 1)))
    wave_sum_n(A, ts, [t + 2 for t in ts])
    for t in ts:
        A.op("v_mul_f32 %s, %s, %s" % (vr(t), f32hex(1.0 / 1024), vr(t)))
    for j in range(16):
        for X, t in zip(Xs, ts):
            A.op("v_sub_f32 %s, %s, %s" % (vr(t + 2 + (j & 1)), vr(X + j), vr(t)))
            if j == 0:
                A.op("v_mul_f32 %s, %s, %s" % (vr(t + 1), vr(t + 2), vr(t + 2)))
            else:
                A.op("v_fmac_f32 %s, %s, %s" % (vr(t + 1), vr(t + 2 + (j & 1)), vr(t + 2 + (j & 1))))
    wave_sum_n(A, [t + 1 for t in ts], [t + 2 for t in ts])
    for t in ts:
        A.op("v_mul_f32 %s, %s, %s" % (vr(t + 1), f32hex(1.0 / 1024), vr(t + 1)))
    for t in ts:
        rnd2(A, t, t + 1, t + 2)
    for t in ts:
        A.op("v_add_f32 %s, %s, %s" % (vr(t + 1), f32hex(1e-5), vr(t + 1)))
    for t in ts:
        rnd1(A, t + 1, t + 2)
    for t in ts:
        A.op("v_sqrt_f32 %s, %s" % (vr(t + 1), vr(t + 1)))
    for t in ts:
        rnd1(A, t + 1, t + 2)
    for t in ts:
        A.op("v_rcp_f32 %s, %s" % (vr(t + 1), vr(t + 1)))


def modulate(A, X, n, mean, rinv, g, sh, T, out):
    for j in range(n):
        A.op("v_sub_f32 %s, %s, %s" % (vr(X + j), vr(X + j), vr(mean)))
    for d in range(n // 2):
        if "noround" not in DBG:
            rnd2(A, X + 2 * d, X + 2 * d + 1, T + d)
    for j in range(n):
        A.op("v_mul_f32 %s, %s, %s" % (vr(X + j), vr(X + j), vr(rinv)))
    for d in range(n // 2):
        if "noround" not in DBG:
            rnd2(A, X + 2 * d, X + 2 * d + 1, T + d)
    for j in range(n):
        A.op("v_mul_f32 %s, %s, %s" % (vr(X + j), vr(X + j), vr(g + j)))
    for d in range(n // 2):
        if "noround" not in DBG:
            rnd2(A, X + 2 * d, X + 2 * d + 1, T + d)
    for j in range(n):
        A.op("v_add_f32 %s, %s, %s" % (vr(X + j), vr(X + j), vr(sh + j)))
    for d in range(n // 2):
        A.op("v_cvt_pk_bf16_f32 %s, %s, %s" % (vr(out + d), vr(X + 2 * d), vr(X + 2 * d + 1)))


def k_front(A):
    L = "front_kernel"
    begin_kernel(A, L, 256)
    A.op("s_load_dwordx4 s[4:7], s[0:1], %d" % KA_C)
    A.op("s_load_dwordx4 s[8:11], s[0:1], %d" % KA_X)
    A.op("s_load_dwordx2 s[40:41], s[0:1], %d" % KA_WS)
    A.op("s_and_b32 s3, s2, 7")
    A.op("s_lshr_b32 s42, s2, 4")
    A.op("s_lshl_b32 s42, s42, 3")
    A.op("s_or_b32 s50, s3, s42")
    A.op("v_and_b32 v1, 63, v0")
    A.op("s_bitcmp1_b32 s2, 3")
    A.op("s_cbranch_scc1 %s_stats" % L)
    A.op("s_and_b32 s3, s50, 31")
    A.op("s_lshl_b32 s42, s3, 7")
    A.op("s_lshr_b32 s43, s50, 5")
    A.op("s_lshl_b32 s44, s43, 8")
    A.op("s_lshl_b32 s45, s43, 13")
    A.op("s_lshl_b32 s3, s3, 8")
    A.op("s_add_u32 s45, s45, s3")
    vC, vWd, vacc, vt, vgw, vgc = 8, 16, 32, 40, 4, 5
    gemv_addr(A, 512, 44, 42, vgw, vgc, vt, 48)
    A.op("s_waitcnt lgkmcnt(0)")
    srd(A, 12, 4, 0, 2048)
    srd(A, 16, 6, 0, WMOD_BYTES)
    gemv_issue(A, 512, 4, 12, 16, vC, vWd, vgw, vgc, 48)
    srd(A, 20, 40, WS_P1, 4 * 2048 * 4)
    gemv_finish(A, 512, 4, 0, vC, vWd, vacc, vt, 0, 20, 45, 46, L)
    stamp(A, 1)
    stamp(A, 2)
    A.op("s_branch %s_fin" % L)
    A.label(L + "_stats")
    A.hist = []
    A.op("v_lshrrev_b32 v2, 6, v0")
    A.op("s_lshl_b32 s3, s50, 4")
    A.op("v_lshl_add_u32 v2, v2, 1, s3")
    A.op("v_lshlrev_b32 v3, 11, v2")
    A.op("v_lshl_add_u32 v3, v1, 4, v3")
    A.op("v_lshlrev_b32 v2, 3, v2")
    A.op("s_waitcnt lgkmcnt(0)")
    srd(A, 24, 8, 0, ACT_BYTES)
    xr = 8
    for r in range(2):
        for h in range(2):
            A.op("buffer_load_dwordx4 %s, v3, s[24:27], 0 offen offset:%d" % (vr(xr + 8 * r + 4 * h, 4), 2048 * r + 1024 * h))
    srd(A, 28, 40, WS_ST1, S * 8)
    A.op("s_waitcnt vmcnt(0)")
    stamp(A, 1)
    row_stats_n(A, [xr, xr + 8], [24, 40], [56, 60])
    A.op("v_mov_b32 v58, v60")
    A.op("v_mov_b32 v59, v61")
    A.op("v_cmp_eq_u32 vcc, 0, v1")
    A.op("s_and_saveexec_b64 s[46:47], vcc")
    A.op("buffer_store_dwordx4 v[56:59], v2, s[28:31], 0 offen")
    stamp(A, 2)
    A.label(L + "_fin")
    end_kernel(A, L, 256, 512, 4096, 64, 64)


def k_mod1(A):
    L = "mod1_kernel"
    begin_kernel(A, L, 256)
    A.op("s_load_dwordx4 s[8:11], s[0:1], %d" % KA_X)
    A.op("s_load_dwordx2 s[40:41], s[0:1], %d" % KA_WS)
    A.op("s_lshr_b32 s3, s2, 4")
    A.op("s_lshl_b32 s3, s3, 7")
    A.op("s_and_b32 s60, s2, 15")
    A.op("v_lshrrev_b32 v1, 3, v0")
    A.op("v_add_u32 v1, s3, v1")
    A.op("v_lshlrev_b32 v2, 3, v1")
    A.op("s_movk_i32 s3, %d" % XS)
    A.op("v_mul_lo_u32 v60, s3, v1")
    A.op("v_lshlrev_b32 v1, 11, v1")
    A.op("v_and_b32 v3, 7, v0")
    A.op("s_lshl_b32 s3, s60, 7")
    A.op("v_lshl_add_u32 v4, v3, 4, s3")
    A.op("v_add_u32 v1, v4, v1")
    A.op("v_add_u32 v60, v4, v60")
    A.op("v_and_b32 v4, 63, v0")
    A.op("v_bfe_u32 v5, v0, 6, 1")
    A.op("v_lshlrev_b32 v5, 12, v5")
    A.op("v_lshl_add_u32 v5, v4, 2, v5")
    A.op("s_lshl_b32 s3, s60, 8")
    A.op("v_add_u32 v5, s3, v5")
    A.op("s_lshl_b32 s3, s2, 9")
    A.op("v_add_lshl_u32 v6, v0, s3, 4")
    for k in range(4):
        A.op("s_mov_b32 s%d, %d" % (64 + k, 8192 * k))
    A.op("s_mov_b32 s72, 0x%x" % (64 * 2048))
    A.op("s_mov_b32 s76, 0x%x" % (64 * XS))
    A.op("s_waitcnt lgkmcnt(0)")
    srd(A, 32, 40, WS_P1, 4 * 2048 * 4)
    srd(A, 28, 40, WS_ST1, S * 8)
    srd(A, 24, 8, 0, ACT_BYTES)
    pp, st, xr = 8, 16, 24
    for k in range(4):
        A.op("buffer_load_dword v%d, v5, s[32:35], s%d offen" % (pp + k, 64 + k))
    for i in range(2):
        A.op("buffer_load_dwordx2 %s, v2, s[28:31], 0 offen offset:%d" % (vr(st + 2 * i, 2), 512 * i))
    for i in range(2):
        A.op("buffer_load_dwordx4 %s, v1, s[24:27], %s offen" % (vr(xr + 4 * i, 4), "s72" if i else "0"))
    P = prefetch(A, 10, 0, opt("PF_MOD1", 2) * MB, 2 * MB, 6, 7, 12, 3)
    srd(A, 36, 40, WS_H1, XP_BYTES)
    srd(A, 16, 40, WS_FLAG, 16384)
    A.op("s_lshl_b32 s3, s2, 11")
    A.op("v_lshl_add_u32 v61, v0, 2, s3")
    A.op("v_mov_b32 v62, 0")
    A.op("buffer_store_dword v62, v61, s[16:19], 0 offen")
    P += 1
    A.op("s_waitcnt vmcnt(%d)" % (P + 4))
    A.op("v_add_f32 v8, v8, v9")
    A.op("v_add_f32 v10, v10, v11")
    A.op("v_add_f32 v8, v8, v10")
    rnd1(A, 8, 9)
    A.op("v_bfe_u32 v9, v0, 6, 1")
    A.op("v_cvt_f32_u32 v9, v9")
    A.op("v_add_f32 v8, v8, v9")
    rnd1(A, 8, 9)
    A.op("v_and_b32 v9, 127, v0")
    A.op("v_lshlrev_b32 v9, 2, v9")
    A.op("ds_write_b32 v9, v8")
    A.op("v_lshlrev_b32 v9, 5, v3")
    A.op("s_waitcnt lgkmcnt(0)")
    A.op("s_barrier")
    sh, g = 32, 40
    A.op("ds_read_b128 %s, v9" % vr(sh, 4))
    A.op("ds_read_b128 %s, v9 offset:16" % vr(sh + 4, 4))
    A.op("ds_read_b128 %s, v9 offset:256" % vr(g, 4))
    A.op("ds_read_b128 %s, v9 offset:272" % vr(g + 4, 4))
    A.op("s_waitcnt vmcnt(%d) lgkmcnt(0)" % P)
    stamp(A, 1)
    X, T = 48, 56
    for i in range(2):
        for d in range(4):
            unpack(A, X + 2 * d, X + 2 * d + 1, xr + 4 * i + d)
        modulate(A, X, 8, st + 2 * i, st + 2 * i + 1, g, sh, T, xr + 4 * i)
        A.op("buffer_store_dwordx4 %s, v60, s[36:39], %s offen" % (vr(xr + 4 * i, 4), "s76" if i else "0"))
    stamp(A, 2)
    end_kernel(A, L, 256, 512, 1024, 64, 80)


def k_ln2(A):
    L = "ln2_kernel"
    begin_kernel(A, L, 512)
    A.op("s_load_dwordx2 s[8:9], s[0:1], %d" % KA_WS)
    A.op("s_load_dwordx4 s[4:7], s[0:1], %d" % KA_W1)
    A.op("v_and_b32 v1, 63, v0")
    A.op("v_lshrrev_b32 v2, 6, v0")
    A.op("s_lshl_b32 s3, s2, 2")
    A.op("v_add_u32 v2, s3, v2")
    A.op("s_movk_i32 s3, %d" % XS)
    A.op("v_mul_lo_u32 v14, s3, v2")
    A.op("v_lshl_add_u32 v14, v1, 4, v14")
    A.op("v_lshlrev_b32 v2, 11, v2")
    A.op("v_lshl_add_u32 v2, v1, 4, v2")
    A.op("v_lshlrev_b32 v3, 5, v1")
    A.op("s_lshl_b32 s3, s2, 8")
    A.op("v_add_lshl_u32 v12, v0, s3, 4")
    A.op("s_movk_i32 s24, %d" % (4 * 4096))
    A.op("s_movk_i32 s25, %d" % (3 * 4096))
    A.op("s_waitcnt lgkmcnt(0)")
    srd(A, 12, 8, WS_X1, ACT_BYTES)
    srd(A, 20, 8, WS_MOD, 6 * D * 4)
    A.op("buffer_load_dwordx4 v[4:7], v2, s[12:15], 0 offen")
    A.op("buffer_load_dwordx4 v[8:11], v2, s[12:15], 0 offen offset:1024")
    for h in range(2):
        for q in range(2):
            A.op("buffer_load_dwordx4 %s, v3, s[20:23], s24 offen offset:%d" % (vr(48 + 8 * h + 4 * q, 4), 2048 * h + 16 * q))
    for h in range(2):
        for q in range(2):
            A.op("buffer_load_dwordx4 %s, v3, s[20:23], s25 offen offset:%d" % (vr(64 + 8 * h + 4 * q, 4), 2048 * h + 16 * q))
    a, b = PF_FF[0], PF_FF[1]
    P = 0
    if b > a:
        P += prefetch(A, 4, a, b, 2 * MB, 12, 13, 28, 3)
        P += prefetch(A, 6, a, b, 2 * MB, 12, 13, 28, 3)
    srd(A, 16, 8, WS_H2, XP_BYTES)
    A.op("s_waitcnt vmcnt(%d)" % (8 + P))
    stamp(A, 1)
    X = 16
    row_stats_n(A, [4], [X], [32])
    A.op("s_waitcnt vmcnt(%d)" % P)
    modulate(A, X, 16, 32, 33, 48, 64, 36, 4)
    A.op("buffer_store_dwordx4 v[4:7], v14, s[16:19], 0 offen")
    A.op("buffer_store_dwordx4 v[8:11], v14, s[16:19], 0 offen offset:1024")
    stamp(A, 2)
    end_kernel(A, L, 512, 256, 0, 80, 32)


PF_FF = (int(opt("PF_A", 3.0) * MB), int(opt("PF_B", 4.5) * MB))


class Ring:
    def __init__(self, base, slot, n, s_wr, s_rd):
        self.base, self.slot, self.n, self.s_wr, self.s_rd = base, slot, n, s_wr, s_rd

    def adv(self, sreg):
        return ["s_add_u32 %s, %s, %d" % (sr(sreg), sr(sreg), self.slot),
                "s_cmp_ge_u32 %s, %d" % (sr(sreg), self.base + self.slot * self.n),
                "s_cselect_b32 %s, %d, %s" % (sr(sreg), self.base, sr(sreg))]

    @property
    def end(self):
        return self.base + self.slot * self.n


class Loop:
    pass


def dma_groups(items, s_mask):
    groups = []
    full = [d for d in items if d["lanes"] == 64]
    part = [d for d in items if d["lanes"] != 64]

    def one(d):
        return ["s_add_u32 m0, %s, %s" % (sr(d["ring"].s_wr), sr(d["ldsoff"])),
                "buffer_load_dwordx4 %s, %s, %s offen lds" % (vr(d["voff"]), sr(d["srd"], 4), sr(d["soff"]))]
    for d in full:
        groups.append(one(d))
    for i in range(0, len(part), 2):
        g = ["s_mov_b64 exec, %s" % sr(s_mask, 2)]
        for d in part[i:i + 2]:
            g += one(d)
        g.append("s_mov_b64 exec, -1")
        groups.append(g)
    return groups


def read_groups(c, stage):
    par = stage & 1
    out = []
    for (kind, dst, addr, off) in c.reads:
        d = dst + par * c.set_stride
        if kind == "b128":
            out.append(["ds_read_b128 %s, %s offset:%d" % (vr(d, 4), vr(addr), off)])
        else:
            out.append(["ds_read_b64_tr_b16 %s, %s offset:%d" % (vr(d, 2), vr(addr), off)])
    return out


def is_vmem(t):
    return t.startswith(("buffer_", "global_"))


def gemm_loop(A, c, L, role, extras=None):
    extras = extras or {}
    n = c.n
    log = []

    def note(groups, body, dma):
        for g in groups:
            for t in g:
                if is_vmem(t):
                    log.append((body, dma and t.endswith("lds")))

    def vm_at(s):
        last = -1
        for i, (b, dma) in enumerate(log):
            if dma and b <= s - c.lag:
                last = i
        issued = [i for i, (b, dma) in enumerate(log) if b < s]
        return len(issued) - 1 - last

    pro = []
    if role == "A":
        for s in range(c.first_body, 0):
            g = c.dma(s)
            note(g, s, True)
            pro += g
    if -1 in extras:
        note(extras[-1], -1, False)
        pro += extras[-1]
    bodies = []
    for s in range(n):
        last = (s == n - 1)
        dma = c.dma(s) if (role == "A" and "nodma" not in DBG) else []
        ex = extras.get(s, [])
        note(dma, s, True)
        note(ex, s, False)
        other = list(dma) + list(ex)
        rd = [] if last or "noread" in DBG else read_groups(c, s + 1)
        fill = [] if last else [c.rsetup(s + 1)]
        if len(other) > len(rd):
            ratio, rpg = (len(other) + max(1, len(rd)) - 1) // max(1, len(rd)), 1
        else:
            ratio, rpg = 1, max(1, min(3, len(rd) // max(1, len(other))))
        while rd or other:
            for _ in range(rpg):
                if rd:
                    fill.append(rd.pop(0))
            for _ in range(ratio):
                if other:
                    fill.append(other.pop(0))
        nm = len(c.mfma)
        span = max(1, int(nm * c.fill_frac))
        slots = [[] for _ in range(nm)]
        for i, f in enumerate(fill):
            slots[min(nm - 1, i * span // max(len(fill), 1))].append(f)
        for sl, f in getattr(c, "placed", {}).get(s, []):
            slots[sl].append(f)
        ins = []
        o = (s & 1) * c.set_stride
        for i, (acc, a, b) in enumerate(c.mfma):
            cin = "0" if (s == 0 and not getattr(c, "acc_init", None)) else vr(acc, 4)
            if "nomfma" not in DBG or s == 0:
                ins.append("v_mfma_f32_16x16x32_bf16 %s, %s, %s, %s" % (vr(acc, 4), vr(a + o, 4), vr(b + o, 4), cin))
            for g in slots[i]:
                ins += g
        ins.append("s_waitcnt lgkmcnt(0)")
        bodies.append(ins)
    ff = getattr(c, "free_from", n)
    for s in range(n - 1):
        head = []
        if s > ff:
            continue
        if role == "A":
            if s == ff:
                save, c.lag = c.lag, 1
                assert all(b < s for b, d in log if d)
            vm = vm_at(s)
            if s == ff:
                c.lag = save
            assert vm <= 63
            head.append("s_waitcnt vmcnt(%d)" % vm)
        head.append("s_barrier")
        if s == ff and role == "A" and opt("GU_PRIO", 1):
            head.append("s_setprio 2")
        bodies[s] = head + bodies[s]
    for g in pro:
        for t in g:
            A.op(t)
    if getattr(c, "acc_init", None):
        c.acc_init()
    if role == "A":
        A.op("s_waitcnt vmcnt(%d)" % (vm_at(-1) + sum(1 for b, d in log if b == -1)))
    A.op("s_barrier")
    for t in c.rsetup(0):
        A.op(t)
    for g in read_groups(c, 0):
        for t in g:
            A.op(t)
    A.op("s_waitcnt lgkmcnt(0)")
    if role == "A":
        stamp(A, 1)
    s = 0
    nloop = 0
    while s < n:
        r = s
        while r + 2 < n and bodies[r + 2] == bodies[r]:
            r += 1
        pairs = (r + 2 - s) // 2 if r > s else 0
        if pairs >= 2:
            lab = "%s_%s_loop%d" % (L, role, nloop)
            nloop += 1
            A.op("s_movk_i32 %s, %d" % (sr(c.s_cnt), pairs))
            A.label(lab)
            mk = A.mark()
            for t in bodies[s] + bodies[s + 1]:
                A.op(t)
            A.op("s_sub_u32 %s, %s, 1" % (sr(c.s_cnt), sr(c.s_cnt)))
            A.op("s_cmp_lg_u32 %s, 0" % sr(c.s_cnt))
            A.op("s_cbranch_scc1 %s" % lab)
            A.check_loop(mk)
            s += 2 * pairs
        else:
            for t in bodies[s]:
                A.op(t)
            s += 1
    if role == "A":
        stamp(A, 2)


def emit_rolled(A, c, L, role, bodies):
    n = len(bodies)
    s = 0
    nloop = 0
    while s < n:
        r = s
        while r + 2 < n and bodies[r + 2] == bodies[r]:
            r += 1
        pairs = (r + 2 - s) // 2 if r > s else 0
        if pairs >= 2:
            lab = "%s_%s_loop%d" % (L, role, nloop)
            nloop += 1
            A.op("s_movk_i32 %s, %d" % (sr(c.s_cnt), pairs))
            if getattr(c, "s_extra", None) is not None and nloop == 1:
                A.op("s_add_u32 %s, %s, %s" % (sr(c.s_cnt), sr(c.s_cnt), sr(c.s_extra)))
            A.label(lab)
            mk = A.mark()
            for t in bodies[s] + bodies[s + 1]:
                A.op(t)
            A.op("s_sub_u32 %s, %s, 1" % (sr(c.s_cnt), sr(c.s_cnt)))
            A.op("s_cmp_lg_u32 %s, 0" % sr(c.s_cnt))
            A.op("s_cbranch_scc1 %s" % lab)
            A.check_loop(mk)
            s += 2 * pairs
        else:
            for t in bodies[s]:
                A.op(t)
            s += 1


def gemm_loader(A, c, L, extras=None):
    extras = extras or {}
    n = c.n
    log = []

    def note(groups, body, dma):
        for g in groups:
            for t in g:
                if is_vmem(t):
                    log.append((body, dma and t.endswith("lds")))

    def vm_at(s):
        last = -1
        for i, (b, dma) in enumerate(log):
            if dma and b <= s - c.lag:
                last = i
        return len([1 for (b, dma) in log if b < s]) - 1 - last
    pro = []
    for s in range(c.first_body, 0):
        g = c.dma(s)
        note(g, s, True)
        pro += g
    if -1 in extras:
        note(extras[-1], -1, False)
        pro += extras[-1]
    bodies = []
    for s in range(n - 1):
        dma = c.dma(s) if "nodma" not in DBG else []
        ex = extras.get(s, [])
        note(dma, s, True)
        note(ex, s, False)
        bodies.append([t for g in dma + ex for t in g])
    for s in range(n - 1):
        vm = vm_at(s)
        assert vm <= 63
        bodies[s] = ["s_waitcnt vmcnt(%d)" % vm] + ([] if "nobar" in DBG else ["s_barrier"]) + bodies[s]
    for g in pro:
        for t in g:
            A.op(t)
    A.op("s_waitcnt vmcnt(%d) lgkmcnt(0)" % (vm_at(-1) + sum(1 for b, d in log if b == -1)))
    A.op("s_barrier")
    emit_rolled(A, c, L, "L", bodies)


def gemm_compute(A, c, L, extras=None):
    extras = extras or {}
    nsub = 2 * c.n
    V2 = opt("CV2", 1)

    def reads(step):
        par = step & 1
        out = []
        for (kind, dst, addr, off) in c.reads:
            d = dst + par * c.set_stride
            if kind == "b128":
                out.append(["ds_read_b128 %s, %s offset:%d" % (vr(d, 4), vr(addr), off)])
            else:
                out.append(["ds_read_b64_tr_b16 %s, %s offset:%d" % (vr(d, 2), vr(addr), off + par * c.w_hoff)])
        return out
    bodies = []
    for t in range(nsub):
        last = (t == nsub - 1)
        other = list(extras.get(t, []))
        rd = [] if last or "noread" in DBG else reads(t + 1)
        nm = len(c.mfma)
        span = max(1, int(nm * c.fill_frac))
        slots = [[] for _ in range(nm)]
        bar = (t & 1) and not last and "nobar" not in DBG
        if V2:
            first = opt("CV2_FIRST", 1) if bar else 0
            if bar and first:
                slots[first - 1].append(["s_barrier"])
            for i, f in enumerate(rd):
                slots[min(nm - 1, first + i * (span - first) // max(len(rd), 1))].append(f)
            if t + 2 < nsub:
                su = c.rsetup(t + 2)
                va = [x for x in su if x.startswith("v_")]
                sa = [x for x in su if not x.startswith("v_")]
                tail = nm - span
                for i, x in enumerate(va):
                    slots[span + min(tail - 1, i * tail // len(va))].append([x])
                if sa:
                    slots[nm - 2 if tail > 1 else nm - 1].append(sa)
        else:
            fill = [] if last else [c.rsetup(t + 1)]
            fill += rd
            for i, f in enumerate(fill):
                slots[min(nm - 1, i * span // max(len(fill), 1))].append(f)
        for i, f in enumerate(other):
            slots[min(nm - 1, i * nm // max(len(other), 1))].append(f)
        ins = []
        if bar and not (V2 and opt("CV2_FIRST", 1)):
            ins.append("s_barrier")
        o = (t & 1) * c.set_stride
        for i, (acc, a, b) in enumerate(c.mfma):
            cin = "0" if t == 0 else vr(acc, 4)
            if "nomfma" not in DBG or t == 0:
                ins.append("v_mfma_f32_16x16x32_bf16 %s, %s, %s, %s" % (vr(acc, 4), vr(a + o, 4), vr(b + o, 4), cin))
            for g in slots[i]:
                ins += g
        ins.append("s_waitcnt lgkmcnt(0)")
        bodies.append(ins)
    for g in extras.get(-1, []):
        for t in g:
            A.op(t)
    A.op("s_barrier")
    for t in c.rsetup(0):
        A.op(t)
    for g in reads(0):
        for t in g:
            A.op(t)
    if V2:
        for t in c.rsetup(1):
            A.op(t)
    A.op("s_waitcnt lgkmcnt(0)")
    stamp(A, 1)
    if V2:
        emit_rolled2(A, c, L, "C", bodies)
    else:
        emit_rolled(A, c, L, "C", bodies)
    stamp(A, 2)


def emit_rolled2(A, c, L, role, bodies):
    cut = opt("CV2_CUT", 0.5)
    parts = []
    carry = []
    for b in bodies:
        mf = [i for i, t in enumerate(b) if t.startswith("v_mfma")]
        k = mf[int(len(mf) * cut)] + 1 if mf else len(b) // 2
        parts.append(carry + b[:k])
        carry = b[k:]
    parts.append(carry)
    n = len(parts)
    U = opt("CV2_UNR", 1) * 2
    s = 0
    nloop = 0
    while s < n:
        r = s
        while r + 2 < n and parts[r + 2] == parts[r]:
            r += 1
        cnt = (r + 2 - s) // U if r > s else 0
        if cnt >= 2:
            lab = "%s_%s_loop%d" % (L, role, nloop)
            nloop += 1
            A.op("s_movk_i32 %s, %d" % (sr(c.s_cnt), cnt))
            if getattr(c, "s_extra", None) is not None and nloop == 1:
                if U == 4:
                    A.op("s_lshr_b32 %s, %s, 1" % (sr(c.s_extra), sr(c.s_extra)))
                A.op("s_add_u32 %s, %s, %s" % (sr(c.s_cnt), sr(c.s_cnt), sr(c.s_extra)))
            A.label(lab)
            mk = A.mark()
            body = [t for q in range(U) for t in parts[s + q]]
            mf = [i for i, t in enumerate(body) if t.startswith("v_mfma")]
            k = mf[-2] + 1
            assert not any(t.startswith("s_") and not t.startswith(("s_waitcnt", "s_barrier")) for t in body[k:])
            body = body[:k] + ["s_sub_u32 %s, %s, 1" % (sr(c.s_cnt), sr(c.s_cnt)), "s_cmp_lg_u32 %s, 0" % sr(c.s_cnt)] + body[k:]
            for t in body:
                A.op(t)
            A.op("s_cbranch_scc1 %s" % lab)
            A.check_loop(mk)
            s += U * cnt
        else:
            for t in parts[s]:
                A.op(t)
            s += 1


def cl_ring_cfg(c, ring, items, koffs, s_mask, cX, bX0, bX1, waddrs):
    c.lag = ring.n - 1
    c.first_body = -ring.n

    def dma(s):
        if s + ring.n >= c.n:
            return []
        g = dma_groups(items, s_mask)
        adv = ["s_add_u32 %s, %s, 0x%x" % (sr(r), sr(r), st) for (r, st) in koffs] + ring.adv(ring.s_wr)
        return g + [adv]

    def rsetup(step):
        if step & 1:
            return ["v_add_u32 %s, %s, %s" % (vr(cX), sr(ring.s_rd), vr(bX1))] + ring.adv(ring.s_rd)
        return ["v_add_u32 %s, %s, %s" % (vr(cX), sr(ring.s_rd), vr(bX0))] + \
               ["v_add_u32 %s, %s, %s" % (vr(cur), sr(ring.s_rd), vr(base)) for (cur, base) in waddrs]
    c.dma, c.rsetup = dma, rsetup
    c.tail_body = c.n - ring.n


def wave_ids(A, s_w):
    A.op("v_lshrrev_b32 v2, 6, v0")
    A.op("v_and_b32 v1, 63, v0")
    A.op("v_readfirstlane_b32 %s, v2" % sr(s_w))


def tile_map(A, mbits_x, jbits_m, s_mt, s_nt):
    A.op("s_and_b32 s3, s2, 7")
    A.op("s_lshr_b32 s44, s2, 3")
    A.op("s_and_b32 s45, s3, %d" % ((1 << mbits_x) - 1))
    A.op("s_lshl_b32 s45, s45, %d" % jbits_m)
    A.op("s_and_b32 s46, s44, %d" % ((1 << jbits_m) - 1))
    A.op("s_add_u32 %s, s45, s46" % sr(s_mt))
    A.op("s_lshr_b32 s45, s3, %d" % mbits_x)
    A.op("s_lshl_b32 s45, s45, %d" % (5 - jbits_m))
    A.op("s_lshr_b32 s46, s44, %d" % jbits_m)
    A.op("s_add_u32 %s, s45, s46" % sr(s_nt))


def xdma_offsets(A, vX, ne, s_row0, rowbytes, tmp, s_t, clamp=False, s_lrow0=None):
    t0, t1, t2, t3 = tmp, tmp + 1, tmp + 2, tmp + 3
    A.op("v_and_b32 %s, 7, v1" % vr(t2))
    A.op("v_lshrrev_b32 %s, 3, v1" % vr(t3))
    A.op("s_movk_i32 %s, %d" % (sr(s_t), rowbytes))
    for e in range(ne):
        if s_lrow0 is None:
            A.op("v_lshrrev_b32 %s, 4, v1" % vr(t1))
            if e & 1:
                A.op("v_or_b32 %s, 4, %s" % (vr(t1), vr(t1)))
        else:
            A.op("v_add_u32 %s, %s, %s" % (vr(t1), sr(s_lrow0), vr(t3)))
            if e:
                A.op("v_add_u32 %s, %d, %s" % (vr(t1), 8 * e, vr(t1)))
            A.op("v_bfe_u32 %s, %s, 1, 3" % (vr(t1), vr(t1)))
        if "noswz" in DBG:
            A.op("v_mov_b32 %s, %s" % (vr(t1), vr(t2)))
        else:
            A.op("v_xor_b32 %s, %s, %s" % (vr(t1), vr(t1), vr(t2)))
        A.op("v_add_u32 %s, %s, %s" % (vr(t0), sr(s_row0), vr(t3)))
        if e:
            A.op("v_add_u32 %s, %d, %s" % (vr(t0), 8 * e, vr(t0)))
        if clamp:
            A.op("v_max_i32 %s, 0, %s" % (vr(t0), vr(t0)))
        A.op("v_mul_lo_u32 %s, %s, %s" % (vr(t0), sr(s_t), vr(t0)))
        A.op("v_lshl_add_u32 %s, %s, 4, %s" % (vr(vX[e]), vr(t1), vr(t0)))


def bk64_frag_bases(A, V, tmp, s_wk, s_wm, s_wn, WBASE, SCH, s_t):
    t0, t1, t2, t3 = tmp, tmp + 1, tmp + 2, tmp + 3
    bX, bW0, bW1 = V.get(), V.get(), V.get()
    A.op("v_and_b32 %s, 15, v1" % vr(t0))
    A.op("v_lshrrev_b32 %s, 4, v1" % vr(t1))
    A.op("s_lshl_b32 %s, %s, 2" % (sr(s_t), sr(s_wk)))
    A.op("v_add_u32 %s, %s, %s" % (vr(t2), sr(s_t), vr(t1)))
    A.op("v_lshrrev_b32 %s, 1, %s" % (vr(t3), vr(t0)))
    A.op("v_xor_b32 %s, %s, %s" % (vr(t2), vr(t2), vr(t3)))
    A.op("v_lshlrev_b32 %s, 4, %s" % (vr(t2), vr(t2)))
    A.op("v_lshl_add_u32 %s, %s, 7, %s" % (vr(t2), vr(t0), vr(t2)))
    A.op("s_lshl_b32 %s, %s, 13" % (sr(s_t), sr(s_wm)))
    A.op("v_add_u32 %s, %s, %s" % (vr(bX), sr(s_t), vr(t2)))
    A.op("v_bfe_u32 %s, v1, 2, 2" % vr(t0))
    A.op("v_lshl_add_u32 %s, %s, 3, %s" % (vr(t2), vr(t1), vr(t0)))
    A.op("s_lshl_b32 %s, %s, 5" % (sr(s_t), sr(s_wk)))
    A.op("v_add_u32 %s, %s, %s" % (vr(t2), sr(s_t), vr(t2)))
    A.op("v_mul_u32_u24 %s, %d, %s" % (vr(t2), 16 * SCH, vr(t2)))
    A.op("v_and_b32 %s, 3, v1" % vr(t3))
    A.op("v_lshl_add_u32 %s, %s, 3, %s" % (vr(t2), vr(t3), vr(t2)))
    A.op("v_add_u32 %s, %d, %s" % (vr(t2), WBASE, vr(t2)))
    A.op("v_lshrrev_b32 %s, 1, %s" % (vr(t0), vr(t0)))
    A.op("v_and_b32 %s, 1, %s" % (vr(t1), vr(t1)))
    A.op("v_lshl_or_b32 %s, %s, 1, %s" % (vr(t0), vr(t1), vr(t0)))
    A.op("s_lshl_b32 %s, %s, 1" % (sr(s_t), sr(s_wn)))
    A.op("v_xor_b32 %s, %s, %s" % (vr(t0), sr(s_t), vr(t0)))
    A.op("v_lshl_add_u32 %s, %s, 5, %s" % (vr(bW0), vr(t0), vr(t2)))
    A.op("v_xor_b32 %s, 1, %s" % (vr(t0), vr(t0)))
    A.op("v_lshl_add_u32 %s, %s, 5, %s" % (vr(bW1), vr(t0), vr(t2)))
    return bX, bW0, bW1


def simple_ring_cfg(c, ring, items, koffs, addrs, s_mask):
    c.lag = ring.n - 1
    c.first_body = -ring.n

    def dma(s):
        if s + ring.n >= c.n:
            return []
        g = dma_groups(items, s_mask)
        adv = ["s_add_u32 %s, %s, 0x%x" % (sr(r), sr(r), st) for (r, st) in koffs] + ring.adv(ring.s_wr)
        return g + [adv]

    def rsetup(stage):
        return ["v_add_u32 %s, %s, %s" % (vr(cur), sr(ring.s_rd), vr(base)) for (cur, base) in addrs] + ring.adv(ring.s_rd)
    c.dma, c.rsetup = dma, rsetup
    c.tail_body = c.n - ring.n


def k_gateup(A):
    L = "gateup_kernel"
    begin_kernel(A, L, 256)
    c = Loop()
    c.n = 32
    c.fill_frac = opt("GU_FILL", 0.85)
    UOFF = 7168 + 128
    xring = Ring(0, 32768, 3, 33, 34)
    wring = Ring(xring.end, UOFF + 7168, 4, 35, 36)
    c.s_cnt = 37
    V = Regs(8)
    acc = V.get(112, 4)
    SET = 44
    fr = V.get(2 * SET, 4)
    c.set_stride = SET
    xf = [fr + 4 * i for i in range(4)]
    wf = [fr + 16 + 4 * i for i in range(7)]
    vX = [V.get() for _ in range(4)]
    vGU = [V.get(), V.get()]
    bX0, bX1, bW0, bW1 = V.get(), V.get(), V.get(), V.get()
    cX, cW0, cW1 = V.get(), V.get(), V.get()
    vpf, vpd = V.get(), V.get()
    tmp = V.get(8)
    t0, t1, t2, t3 = tmp, tmp + 1, tmp + 2, tmp + 3
    sX, sG, sU, sO = 12, 16, 20, 24
    s_w, s_wm, s_wn, s_m0, s_n0 = 28, 29, 30, 31, 32
    s_mask = 38
    s_kx0, s_kx1, s_kw = 40, 41, 42
    s_lx = list(range(48, 56))
    s_lw = list(range(56, 60))
    A.op("s_load_dwordx4 s[4:7], s[0:1], %d" % KA_W1)
    A.op("s_load_dwordx2 s[8:9], s[0:1], %d" % KA_WS)
    A.op("s_load_dwordx2 s[10:11], s[0:1], %d" % KA_W2)
    wave_ids(A, s_w)
    tile_map(A, 1, 2, s_m0, s_n0)
    A.op("s_lshl_b32 %s, %s, 8" % (sr(s_m0), sr(s_m0)))
    A.op("s_mul_i32 %s, %s, 112" % (sr(s_n0), sr(s_n0)))
    A.op("s_and_b32 %s, %s, 3" % (sr(s_wm), sr(s_w)))
    A.op("s_lshr_b32 %s, %s, 2" % (sr(s_wn), sr(s_w)))
    A.op("s_mov_b32 %s, %d" % (sr(xring.s_rd), xring.base))
    A.op("s_mov_b32 %s, %d" % (sr(wring.s_rd), wring.base))
    A.op("v_and_b32 %s, 15, v1" % vr(t0))
    A.op("v_lshrrev_b32 %s, 4, v1" % vr(t1))
    A.op("v_lshrrev_b32 %s, 1, %s" % (vr(t2), vr(t0)))
    A.op("v_xor_b32 %s, %s, %s" % (vr(t2), vr(t2), vr(t1)))
    A.op("v_lshlrev_b32 %s, 4, %s" % (vr(t2), vr(t2)))
    A.op("v_lshl_add_u32 %s, %s, 7, %s" % (vr(t2), vr(t0), vr(t2)))
    A.op("s_lshl_b32 s44, %s, 13" % sr(s_wm))
    A.op("v_add_u32 %s, s44, %s" % (vr(bX0), vr(t2)))
    A.op("v_xor_b32 %s, 64, %s" % (vr(bX1), vr(bX0)))
    A.op("v_bfe_u32 %s, v1, 2, 2" % vr(t0))
    A.op("v_lshl_add_u32 %s, %s, 3, %s" % (vr(t0), vr(t1), vr(t0)))
    A.op("v_mul_u32_u24 %s, 0xe0, %s" % (vr(t0), vr(t0)))
    A.op("v_bfe_u32 %s, v1, 1, 1" % vr(t2))
    A.op("s_movk_i32 s44, %d" % UOFF)
    A.op("v_mad_u32_u24 %s, %s, s44, %s" % (vr(t0), vr(t2), vr(t0)))
    A.op("v_and_b32 %s, 1, v1" % vr(t2))
    A.op("v_lshl_add_u32 %s, %s, 3, %s" % (vr(t0), vr(t2), vr(t0)))
    A.op("s_mul_i32 s44, %s, 112" % sr(s_wn))
    A.op("v_add_u32 %s, s44, %s" % (vr(t0), vr(t0)))
    A.op("v_and_b32 %s, 1, %s" % (vr(t2), vr(t1)))
    A.op("v_lshlrev_b32 %s, 4, %s" % (vr(t2), vr(t2)))
    A.op("v_add_u32 %s, %s, %s" % (vr(t3), vr(t0), vr(t2)))
    A.op("v_sub_u32 %s, %s, %s" % (vr(t0), vr(t0), vr(t2)))
    A.op("s_cmp_eq_u32 %s, 0" % sr(s_wn))
    A.op("s_cselect_b64 vcc, -1, 0")
    A.op("v_cndmask_b32 %s, %s, %s, vcc" % (vr(bW0), vr(t0), vr(t3)))
    A.op("v_cndmask_b32 %s, %s, %s, vcc" % (vr(bW1), vr(t3), vr(t0)))
    c.reads = []
    order = [("x", 0), ("w", 0), ("w", 1), ("x", 1), ("w", 2), ("w", 3), ("x", 2), ("w", 4), ("x", 3), ("w", 5), ("w", 6)]
    for kind, i in order:
        if kind == "x":
            c.reads.append(("b128", xf[i], cX, 2048 * i))
        else:
            for t in range(2):
                c.reads.append(("tr", wf[i] + 2 * t, cW1 if i & 1 else cW0, 896 * t + 16 * i))
    c.mfma = [(acc + 4 * (mt * 7 + tau), wf[tau], xf[mt]) for mt in range(4) for tau in range(7)]
    if opt("GU_ORDER", 0) == 1:
        c.mfma = [(acc + 4 * (mt * 7 + tau), wf[tau], xf[mt]) for tau in range(7) for mt in range(4)]
    if opt("GU_ORDER", 0) == 2:
        c.mfma = [(acc + 4 * (mt * 7 + tau), wf[tau], xf[mt]) for mt in range(4)
                  for tau in (range(7) if mt % 2 == 0 else range(6, -1, -1))]
    c.lag, c.first_body = 3, -5
    c.free_from = opt("GU_FREE", 99)

    def dma(s):
        g = []
        h = 0 if (s & 1) else 1
        blk = (s + 5) // 2 if h == 0 else (s + 4) // 2
        if blk < c.n // 2:
            items = [dict(ring=xring, srd=sX, voff=vX[e], soff=s_kx1 if h else s_kx0, ldsoff=s_lx[4 * h + e], lanes=64)
                     for e in range(4)]
            g += dma_groups(items, s_mask)
            if h:
                g.append(["s_add_u32 %s, %s, 128" % (sr(s_kx0), sr(s_kx0)),
                          "s_add_u32 %s, %s, 128" % (sr(s_kx1), sr(s_kx1))] + xring.adv(xring.s_wr))
        if -4 <= s and s + 4 < c.n:
            items = [dict(ring=wring, srd=sG, voff=vGU[0], soff=s_kw, ldsoff=s_lw[0], lanes=56),
                     dict(ring=wring, srd=sU, voff=vGU[0], soff=s_kw, ldsoff=s_lw[2], lanes=56),
                     dict(ring=wring, srd=sG, voff=vGU[1], soff=s_kw, ldsoff=s_lw[1], lanes=56),
                     dict(ring=wring, srd=sU, voff=vGU[1], soff=s_kw, ldsoff=s_lw[3], lanes=56)]
            w = dma_groups(items, s_mask)
            w.append(["s_add_u32 %s, %s, 0x%x" % (sr(s_kw), sr(s_kw), 32 * 7168)] + wring.adv(wring.s_wr))
            g = w[:1] + g[:2] + w[1:] + g[2:]
        return g

    def rsetup(stage):
        out = ["v_add_u32 %s, %s, %s" % (vr(cX), sr(xring.s_rd), vr(bX1 if stage & 1 else bX0)),
               "v_add_u32 %s, %s, %s" % (vr(cW0), sr(wring.s_rd), vr(bW0)),
               "v_add_u32 %s, %s, %s" % (vr(cW1), sr(wring.s_rd), vr(bW1))] + wring.adv(wring.s_rd)
        if stage & 1:
            out += xring.adv(xring.s_rd)
        return out
    c.dma, c.rsetup = dma, rsetup
    tail_body = 28
    A.op("s_lshl_b32 s44, s2, 9")
    A.op("v_add_lshl_u32 %s, v0, s44, 5" % vr(vpf))

    def tail_pf():
        R = Rec()
        prefetch(R, 10, 0, FF_BYTES, 4 * MB, vpf, vpd, 60, 44)
        return [R.l]
    UBT = wring.end
    RST = wring.end + 1792
    vRS = V.get()
    if F2:
        A.op("v_and_b32 %s, 15, v1" % vr(t0))
        A.op("s_lshl_b32 s44, %s, 10" % sr(s_wm))
        A.op("s_add_u32 s44, s44, %d" % RST)
        A.op("v_lshl_add_u32 %s, %s, 4, s44" % (vr(vRS), vr(t0)))

        vUB = V.get()
        rc = V.get(8, 2)
        ub = V.get(8, 4)
        A.op("v_and_b32 %s, 48, v1" % vr(t0))
        A.op("s_mul_i32 s44, %s, 448" % sr(s_wn))
        A.op("s_add_u32 s44, s44, %d" % UBT)
        A.op("v_add_u32 %s, s44, %s" % (vr(vUB), vr(t0)))
        c.placed = {}
        B0 = opt("GU_CORR0", 2)
        for tau in range(8):
            pl = []
            if tau == 0:
                for mt in range(4):
                    pl.append((20 + mt, ["ds_read_b64 %s, %s offset:%d" % (vr(rc + 2 * mt, 2), vr(vRS), 256 * mt)]))
            else:
                tp = tau - 1
                slots_used = []
                for mt in range(4):
                    a_ = acc + 4 * (mt * 7 + tp)
                    g = ["v_fmac_f32 %s, %s, %s" % (vr(a_ + r), vr(rc + 2 * mt), vr(ub + r)) for r in range(4)] + \
                        ["v_fmac_f32 %s, %s, %s" % (vr(a_ + r), vr(rc + 2 * mt + 1), vr(ub + 4 + r)) for r in range(4)]
                    own = 7 * mt + tp
                    sl = own + 9 if own + 9 <= 24 else own - 9
                    pl.append((sl, g))
            if tau < 7:
                pl.append((25, ["ds_read_b128 %s, %s offset:%d" % (vr(ub, 4), vr(vUB), 64 * tau),
                                "ds_read_b128 %s, %s offset:%d" % (vr(ub + 4, 4), vr(vUB), 896 + 64 * tau)]))
            c.placed[B0 + tau] = pl
    A.op("s_cmp_lg_u32 %s, 0" % sr(s_wn))
    A.op("s_cbranch_scc1 %s_B" % L)
    A.op("s_mov_b32 %s, -1" % sr(s_mask))
    A.op("s_mov_b32 %s, 0x00ffffff" % sr(s_mask + 1))
    A.op("s_mov_b32 %s, %d" % (sr(xring.s_wr), xring.base))
    A.op("s_mov_b32 %s, %d" % (sr(wring.s_wr), wring.base))
    A.op("s_mov_b32 %s, 0" % sr(s_kx0))
    A.op("s_mov_b32 %s, 0x%x" % (sr(s_kx1), 128 * XS))
    A.op("s_mov_b32 %s, 0" % sr(s_kw))
    A.op("s_lshl_b32 %s, %s, 12" % (sr(s_lx[0]), sr(s_w)))
    for k in range(1, 8):
        A.op("s_add_u32 %s, %s, %d" % (sr(s_lx[k]), sr(s_lx[0]), 1024 * (k & 3) + 16384 * (k >> 2)))
    A.op("s_mul_i32 %s, %s, 1792" % (sr(s_lw[0]), sr(s_w)))
    A.op("s_add_u32 %s, %s, 896" % (sr(s_lw[1]), sr(s_lw[0])))
    A.op("s_add_u32 %s, %s, %d" % (sr(s_lw[2]), sr(s_lw[0]), UOFF))
    A.op("s_add_u32 %s, %s, %d" % (sr(s_lw[3]), sr(s_lw[0]), UOFF + 896))
    A.op("s_lshl_b32 s45, %s, 5" % sr(s_w))
    A.op("s_add_u32 s45, s45, %s" % sr(s_m0))
    xdma_offsets(A, vX, 4, 45, XS, tmp, 44)
    A.op("v_mul_u32_u24 %s, 37, v1" % vr(t0))
    A.op("v_lshrrev_b32 %s, 9, %s" % (vr(t0), vr(t0)))
    A.op("v_mul_u32_u24 %s, 14, %s" % (vr(t1), vr(t0)))
    A.op("v_sub_u32 %s, v1, %s" % (vr(t1), vr(t1)))
    A.op("s_and_b32 s44, %s, 1" % sr(s_w))
    A.op("v_xor_b32 %s, s44, %s" % (vr(t1), vr(t1)))
    A.op("s_lshl_b32 s44, %s, 3" % sr(s_w))
    A.op("v_add_u32 %s, s44, %s" % (vr(t0), vr(t0)))
    A.op("s_movk_i32 s44, 7168")
    A.op("v_mul_u32_u24 %s, s44, %s" % (vr(t0), vr(t0)))
    A.op("v_lshl_add_u32 %s, %s, 4, %s" % (vr(t0), vr(t1), vr(t0)))
    A.op("s_lshl_b32 s44, %s, 1" % sr(s_n0))
    A.op("v_add_u32 %s, s44, %s" % (vr(vGU[0]), vr(t0)))
    A.op("v_add_u32 %s, %d, %s" % (vr(vGU[1]), 4 * 7168, vr(vGU[0])))
    A.op("s_waitcnt lgkmcnt(0)")
    srd(A, sX, 8, WS_H2, XP_BYTES)
    srd(A, sG, 4, 0, FF_BYTES)
    srd(A, sU, 6, 0, FF_BYTES)
    gemm_loop(A, c, L, "A", {tail_body: tail_pf()})
    A.op("s_branch %s_join" % L)
    A.label(L + "_B")
    A.hist = []
    ex = {tail_body: tail_pf()}
    R = Rec()
    R.op("v_and_b32 %s, 255, v0" % vr(t0))
    R.op("s_lshl_b32 s44, s2, 8")
    R.op("v_add_lshl_u32 %s, %s, s44, 5" % (vr(vX[0]), vr(t0)))
    R.op("s_waitcnt lgkmcnt(0)")
    if F2:
        ps = acc
        srd(R, 60, 8, WS_ST2, 32 * 16384)
        R.op("v_lshrrev_b32 %s, 6, %s" % (vr(t1), vr(t0)))
        R.op("s_lshr_b32 s44, %s, 6" % sr(s_m0))
        R.op("v_add_lshl_u32 %s, %s, s44, 14" % (vr(t1), vr(t1)))
        R.op("v_lshl_add_u32 %s, v1, 3, %s" % (vr(t1), vr(t1)))
        for cg in range(32):
            if cg % 8 == 0:
                R.op("s_movk_i32 s44, %d" % (512 * cg))
            R.op("buffer_load_dwordx2 %s, %s, s[60:63], s44 offen offset:%d" % (vr(ps + 2 * cg, 2), vr(t1), 512 * (cg % 8)))
        srd(R, 12, 8, WS_UB, 4 * 7168 * 4)
        R.op("v_min_u32 %s, 223, %s" % (vr(t2), vr(t0)))
        R.op("v_lshrrev_b32 %s, 4, %s" % (vr(t3), vr(t2)))
        R.op("v_and_b32 %s, 7, %s" % (vr(tmp + 4), vr(t2)))
        R.op("v_lshl_add_u32 %s, %s, 3, %s" % (vr(t3), vr(t3), vr(tmp + 4)))
        R.op("v_add_u32 %s, %s, %s" % (vr(t3), sr(s_n0), vr(t3)))
        R.op("v_bfe_u32 %s, %s, 3, 1" % (vr(tmp + 4), vr(t2)))
        R.op("s_movk_i32 s44, 3584")
        R.op("v_mad_u32_u24 %s, %s, s44, %s" % (vr(t3), vr(tmp + 4), vr(t3)))
        R.op("v_lshlrev_b32 %s, 2, %s" % (vr(t3), vr(t3)))
        uv = fr
        for q in range(4):
            R.op("s_mov_b32 s44, %d" % (7168 * 4 * q))
            R.op("buffer_load_dword %s, %s, s[12:15], s44 offen" % (vr(uv + q), vr(t3)))
        R.op("v_lshlrev_b32 %s, 2, %s" % (vr(t2), vr(t2)))
        R.op("v_add_u32 %s, %d, %s" % (vr(t2), UBT, vr(t2)))
        R.op("v_lshlrev_b32 %s, 4, %s" % (vr(t1), vr(t0)))
        R.op("v_add_u32 %s, %d, %s" % (vr(t1), RST, vr(t1)))
        R.op("s_waitcnt vmcnt(4)")
        o4 = fr + 4
        w0, w1_ = fr + 8, fr + 9
        R.op("v_add_f32 %s, %s, %s" % (vr(w0), vr(ps), vr(ps + 2)))
        R.op("v_add_f32 %s, %s, %s" % (vr(w1_), vr(ps + 1), vr(ps + 3)))
        for cg in range(2, 32):
            R.op("v_add_f32 %s, %s, %s" % (vr(w0), vr(w0), vr(ps + 2 * cg)))
            R.op("v_add_f32 %s, %s, %s" % (vr(w1_), vr(w1_), vr(ps + 2 * cg + 1)))
        R.op("v_mul_f32 %s, %s, %s" % (vr(w0), f32hex(1.0 / 32), vr(w0)))
        R.op("v_mov_b32 %s, 0" % vr(fr + 10))
        for cg in range(32):
            R.op("v_sub_f32 %s, %s, %s" % (vr(ps + 2 * cg), vr(ps + 2 * cg), vr(w0)))
        for cg in range(32):
            R.op("v_fmac_f32 %s, %s, %s" % (vr(fr + 10), vr(ps + 2 * cg), vr(ps + 2 * cg)))
        R.op("v_mov_b32 %s, %s" % (vr(fr + 11), f32hex(32.0)))
        R.op("v_fmac_f32 %s, %s, %s" % (vr(w1_), vr(fr + 10), vr(fr + 11)))
        R.op("v_mul_f32 %s, %s, %s" % (vr(w1_), f32hex(1.0 / 1024), vr(w1_)))
        rnd2(R, w0, w1_, fr + 10)
        R.op("v_add_f32 %s, %s, %s" % (vr(w1_), f32hex(1e-5), vr(w1_)))
        rnd1(R, w1_, fr + 10)
        R.op("v_sqrt_f32 %s, %s" % (vr(w1_), vr(w1_)))
        rnd1(R, w1_, fr + 10)
        R.op("v_sub_f32 %s, 0, %s" % (vr(o4), vr(w0)))
        R.op("v_mov_b32 %s, %s" % (vr(o4 + 1), vr(w1_)))
        R.op("v_rcp_f32 %s, %s" % (vr(o4 + 2), vr(w1_)))
        R.op("v_mov_b32 %s, 0" % vr(o4 + 3))
        R.op("ds_write_b128 %s, %s" % (vr(t1), vr(o4, 4)))
        R.op("s_waitcnt vmcnt(0)")
        R.op("v_add_f32 %s, %s, %s" % (vr(uv), vr(uv), vr(uv + 2)))
        R.op("v_add_f32 %s, %s, %s" % (vr(uv + 1), vr(uv + 1), vr(uv + 3)))
        R.op("ds_write_b32 %s, %s" % (vr(t2), vr(uv)))
        R.op("ds_write_b32 %s, %s offset:896" % (vr(t2), vr(uv + 1)))
        R.op("s_waitcnt lgkmcnt(0)")
    ex[-1] = [R.l]
    b = 0
    step = opt("GU_PFSTEP", 1)
    for o in range(FF_BYTES if F2 else PF_FF[1], FF_BYTES, 2 * MB):
        for sp in (4, 6):
            R = Rec()
            prefetch(R, sp, o, min(FF_BYTES, o + 2 * MB), 2 * MB, vX[0], vpd, 60, 44)
            ex[b] = [R.l]
            b += step
    gemm_loop(A, c, L, "B", ex)
    A.label(L + "_join")
    A.flush()
    srd(A, sO, 8, WS_HH, HH_BYTES)
    A.op("v_and_b32 %s, 15, v1" % vr(t0))
    A.op("s_lshl_b32 s44, %s, 6" % sr(s_wm))
    A.op("s_add_u32 s44, s44, %s" % sr(s_m0))
    A.op("v_add_u32 %s, s44, %s" % (vr(t0), vr(t0)))
    A.op("s_movk_i32 s44, %d" % HS)
    A.op("v_mul_lo_u32 %s, s44, %s" % (vr(t0), vr(t0)))
    A.op("s_mul_i32 s44, %s, 56" % sr(s_wn))
    A.op("s_add_u32 s44, s44, %s" % sr(s_n0))
    A.op("s_lshl_b32 s44, s44, 1")
    A.op("v_add_u32 %s, s44, %s" % (vr(t0), vr(t0)))
    A.op("v_lshrrev_b32 %s, 4, v1" % vr(t1))
    A.op("s_mov_b32 s45, %d" % (16 * HS - 112))
    A.op("s_mov_b32 s46, 0xbfb8aa3b")
    A.op("s_mov_b32 s47, 0xbfb8aa3b")
    pk = [fr + 4 * i for i in range(7)]
    ad = [fr + 32 + i for i in range(7)]
    e = fr + 44
    if F2:
        ri = fr + 56
        for mt in range(4):
            A.op("ds_read_b32 %s, %s offset:%d" % (vr(ri + 2 * mt), vr(vRS), 256 * mt + 8))
        A.op("s_waitcnt lgkmcnt(0)")
        for mt in range(4):
            A.op("v_mov_b32 %s, %s" % (vr(ri + 2 * mt + 1), vr(ri + 2 * mt)))
    for grp in range(7):
        q = [4 * grp + g for g in range(4)]
        ac = [acc + 4 * x for x in q]
        if F2:
            for x in range(4):
                for r in (0, 2):
                    A.op("v_pk_mul_f32 %s, %s, %s" % (vr(ac[x] + r, 2), vr(ac[x] + r, 2), vr(ri + 2 * (q[x] // 7), 2)))
        for r in range(4):
            A.op("v_permlane32_swap_b32 %s, %s" % (vr(ac[0] + r), vr(ac[2] + r)))
        for r in range(4):
            A.op("v_permlane32_swap_b32 %s, %s" % (vr(ac[1] + r), vr(ac[3] + r)))
        for h in range(2):
            for r in (0, 2):
                A.op("v_pk_mul_f32 %s, %s, s[46:47]" % (vr(e + 4 * h + r, 2), vr(ac[h] + r, 2)))
        for x in range(8):
            if "gu_notrans" not in DBG:
                A.op("v_exp_f32 %s, %s" % (vr(e + x), vr(e + x)))
        for h in range(2):
            for r in (0, 2):
                A.op("v_pk_mul_f32 %s, %s, %s" % (vr(ac[h] + r, 2), vr(ac[h] + r, 2), vr(ac[h + 2] + r, 2)))
        for x in range(0, 8, 2):
            A.op("v_pk_add_f32 %s, %s, 1.0 op_sel_hi:[1,0]" % (vr(e + x, 2), vr(e + x, 2)))
        A.op("v_add_u32 %s, %d, %s" % (vr(t2), 4 * grp, vr(t1)))
        A.op("v_mul_u32_u24 %s, 37, %s" % (vr(t3), vr(t2)))
        for x in range(8):
            if "gu_notrans" not in DBG:
                A.op("v_rcp_f32 %s, %s" % (vr(e + x), vr(e + x)))
        A.op("v_lshrrev_b32 %s, 8, %s" % (vr(t3), vr(t3)))
        A.op("v_lshl_add_u32 %s, %s, 4, %s" % (vr(t2), vr(t2), vr(t0)))
        A.op("v_mad_u32_u24 %s, %s, s45, %s" % (vr(ad[grp]), vr(t3), vr(t2)))
        for h in range(2):
            for r in (0, 2):
                A.op("v_pk_mul_f32 %s, %s, %s" % (vr(ac[h] + r, 2), vr(ac[h] + r, 2), vr(e + 4 * h + r, 2)))
        for h in range(2):
            A.op("v_cvt_pk_bf16_f32 %s, %s, %s" % (vr(pk[grp] + 2 * h), vr(ac[h]), vr(ac[h] + 1)))
            A.op("v_cvt_pk_bf16_f32 %s, %s, %s" % (vr(pk[grp] + 2 * h + 1), vr(ac[h] + 2), vr(ac[h] + 3)))
        A.op("v_permlane16_swap_b32 %s, %s" % (vr(pk[grp]), vr(pk[grp] + 2)))
        A.op("v_permlane16_swap_b32 %s, %s" % (vr(pk[grp] + 1), vr(pk[grp] + 3)))
        if "gu_nostore" not in DBG:
            A.op("buffer_store_dwordx4 %s, %s, %s, 0 offen" % (vr(pk[grp], 4), vr(ad[grp]), sr(sO, 4)))
        WBL = [int(x) for x in opt("GU_WB", "").split("_") if x != ""]
        if grp in WBL:
            A.op("s_lshr_b32 s44, s2, 3")
            A.op("s_and_b32 s44, s44, %d" % opt("GU_WBMASK", 31))
            A.op("s_or_b32 s44, s44, %s" % sr(s_w))
            A.op("s_cmp_lg_u32 s44, 0")
            A.op("s_cbranch_scc1 %s_wb%d" % (L, grp))
            A.raw("    buffer_wbl2 sc1")
            A.label("%s_wb%d" % (L, grp))
    end_kernel(A, L, 256, 512, (RST + 4096) if F2 else wring.end, V.n, 64)


def k_proj3(A, L, K, x_off, XROW, ka_w, is_wo):
    begin_kernel(A, L, 256)
    c = Loop()
    c.n = K // 64
    WB = 16384
    ring = Ring(0, 16384 + 8192, 6, 34, 35)
    c.s_cnt = 36
    c.fill_frac = opt("PJ_FILL", 0.75)
    c.w_hoff = 32 * 8 * 16
    x_bytes = S * XROW
    V = Regs(8)
    acc = V.get(32, 4)
    SET = 24
    fr = V.get(2 * SET, 4)
    c.set_stride = SET
    xf = [fr + 4 * i for i in range(4)]
    wf = [fr + 16 + 4 * i for i in range(2)]
    vX = [V.get() for _ in range(4)]
    vW = [V.get(), V.get()]
    cX, cW0, cW1, bX1 = V.get(), V.get(), V.get(), V.get()
    tmp = V.get(8)
    t0, t1, t2, t3 = tmp, tmp + 1, tmp + 2, tmp + 3
    sX, sW, sR, sO, sM, sP = 12, 16, 20, 24, 48, 60
    s_w, s_z, s_wm, s_wn, s_m0, s_n0 = 28, 29, 30, 31, 32, 33
    s_kx, s_kw = 38, 39
    s_l = [52, 53, 54, 55, 56, 57]
    A.op("s_load_dwordx2 s[4:5], s[0:1], %d" % ka_w)
    A.op("s_load_dwordx2 s[8:9], s[0:1], %d" % KA_WS)
    A.op("s_load_dwordx2 s[6:7], s[0:1], %d" % (KA_X if is_wo else KA_OUT))
    if is_wo:
        A.op("s_load_dwordx4 s[64:67], s[0:1], %d" % KA_W1)
    wave_ids(A, s_w)
    mbx = opt("PJ_MBX", 1)
    tile_map(A, mbx, 4 - mbx, s_m0, s_n0)
    A.op("s_lshl_b32 %s, %s, 7" % (sr(s_m0), sr(s_m0)))
    A.op("s_lshl_b32 %s, %s, 6" % (sr(s_n0), sr(s_n0)))
    items = [dict(ring=ring, srd=sW, voff=vW[e], soff=s_kw, ldsoff=s_l[4 + e], lanes=64) for e in range(2)] + \
            [dict(ring=ring, srd=sX, voff=vX[e], soff=s_kx, ldsoff=s_l[e], lanes=64) for e in range(4)]
    A.op("s_cmp_ge_u32 %s, 4" % sr(s_w))
    A.op("s_cbranch_scc1 %s_L" % L)
    A.op("s_mov_b32 %s, 0" % sr(s_z))
    A.op("s_lshr_b32 %s, %s, 1" % (sr(s_wm), sr(s_w)))
    A.op("s_and_b32 %s, %s, 1" % (sr(s_wn), sr(s_w)))
    A.op("s_mov_b32 %s, 0" % sr(ring.s_rd))
    bX, bW0, bW1 = bk64_frag_bases(A, V, tmp, s_z, s_wm, s_wn, WB, 8, 44)
    A.op("v_xor_b32 %s, 64, %s" % (vr(bX1), vr(bX)))
    cl_ring_cfg(c, ring, items, [(s_kx, 128), (s_kw, 64 * 2048)], 0, cX, bX, bX1, [(cW0, bW0), (cW1, bW1)])
    c.reads = []
    for kind, i in [("x", 0), ("w", 0), ("w", 1), ("x", 1), ("x", 2), ("x", 3)]:
        if kind == "x":
            c.reads.append(("b128", xf[i], cX, 2048 * i))
        else:
            for t in range(2):
                c.reads.append(("tr", wf[i] + 2 * t, cW1 if i else cW0, 512 * t))
    c.mfma = [(acc + 4 * (mt * 2 + tau), wf[tau], xf[mt]) for mt in range(4) for tau in range(2)]
    vRO, vGO = V.get(), V.get()
    A.op("v_and_b32 %s, 15, v1" % vr(t0))
    A.op("s_lshl_b32 s44, %s, 6" % sr(s_wm))
    A.op("s_add_u32 s44, s44, %s" % sr(s_m0))
    A.op("v_add_u32 %s, s44, %s" % (vr(t0), vr(t0)))
    A.op("v_lshlrev_b32 %s, 11, %s" % (vr(t0), vr(t0)))
    A.op("v_bfe_u32 %s, v1, 4, 1" % vr(t1))
    A.op("v_lshlrev_b32 %s, 4, %s" % (vr(t1), vr(t1)))
    A.op("v_bfe_u32 %s, v1, 5, 1" % vr(t2))
    A.op("v_lshl_or_b32 %s, %s, 3, %s" % (vr(t1), vr(t2), vr(t1)))
    A.op("s_lshl_b32 s44, %s, 5" % sr(s_wn))
    A.op("s_add_u32 s44, s44, %s" % sr(s_n0))
    A.op("v_add_u32 %s, s44, %s" % (vr(t1), vr(t1)))
    A.op("v_lshl_add_u32 %s, %s, 1, %s" % (vr(vRO), vr(t1), vr(t0)))
    A.op("v_lshlrev_b32 %s, 2, %s" % (vr(vGO), vr(t1)))
    res = V.get(16, 4)
    gt = V.get(32 if is_wo else 8, 4)
    f2 = is_wo and F2
    TAB2 = ring.end
    RED2 = ring.end + 4096
    if f2:
        gt2 = V.get(32, 4)
        vYO, vSO = V.get(), V.get()
        A.op("v_and_b32 %s, 15, v1" % vr(t0))
        A.op("s_lshl_b32 s44, %s, 6" % sr(s_wm))
        A.op("s_add_u32 s44, s44, %s" % sr(s_m0))
        A.op("v_add_u32 %s, s44, %s" % (vr(t0), vr(t0)))
        A.op("s_movk_i32 s45, %d" % XS)
        A.op("v_mul_lo_u32 %s, s45, %s" % (vr(t0), vr(t0)))
        A.op("v_lshl_add_u32 %s, %s, 1, %s" % (vr(vYO), vr(t1), vr(t0)))
        A.op("s_lshl_b32 s44, s44, 8")
        A.op("s_lshl_b32 s45, %s, 5" % sr(s_wn))
        A.op("s_add_u32 s45, s45, %s" % sr(s_n0))
        A.op("s_lshl_b32 s45, s45, 4")
        A.op("s_add_u32 s44, s44, s45")
        A.op("v_lshl_add_u32 %s, v1, 3, s44" % vr(vSO))
        for j in range(4):
            A.op("s_mov_b32 s%d, 0x%x" % (68 + j, 16 * XS * j))
    for j in range(4):
        A.op("s_mov_b32 s%d, 0x%x" % (40 + j, 0x8000 * j))
    R = Rec()
    R.op("s_waitcnt lgkmcnt(0)")
    if is_wo:
        srd(R, sR, 6, 0, ACT_BYTES)
        srd(R, sO, 8, WS_X1, ACT_BYTES)
        srd(R, sP, 8, WS_P2, 4 * 4096 * 4)
        if f2:
            R.op("s_cmp_ge_u32 s2, 112")
            R.op("s_cselect_b32 s44, 2048, 0")
            R.op("v_lshl_add_u32 %s, v0, 3, s44" % vr(t0))
            for k in range(4):
                R.op("s_mov_b32 s44, %d" % (16384 * k + 4096))
                R.op("buffer_load_dwordx2 %s, %s, %s, s44 offen" % (vr(fr + 2 * k, 2), vr(t0), sr(sP, 4)))
                R.op("s_mov_b32 s44, %d" % (16384 * k + 8192))
                R.op("buffer_load_dwordx2 %s, %s, %s, s44 offen" % (vr(fr + 8 + 2 * k, 2), vr(t0), sr(sP, 4)))
            srd(R, 72, 8, WS_H2, XP_BYTES)
            srd(R, 76, 8, WS_ST2, 32 * 16384)
            R.op("v_lshlrev_b32 %s, 4, v0" % vr(t0))
            R.op("v_add_u32 %s, %d, %s" % (vr(t0), TAB2, vr(t0)))
            R.op("s_waitcnt vmcnt(0)")
            for b0 in (fr, fr + 8):
                R.op("v_pk_add_f32 %s, %s, %s" % (vr(b0, 2), vr(b0, 2), vr(b0 + 2, 2)))
                R.op("v_pk_add_f32 %s, %s, %s" % (vr(b0 + 4, 2), vr(b0 + 4, 2), vr(b0 + 6, 2)))
                R.op("v_pk_add_f32 %s, %s, %s" % (vr(b0, 2), vr(b0, 2), vr(b0 + 4, 2)))
                rnd2(R, b0, b0 + 1, b0 + 2)
            R.op("v_add_f32 %s, 1.0, %s" % (vr(fr + 8), vr(fr + 8)))
            R.op("v_add_f32 %s, 1.0, %s" % (vr(fr + 9), vr(fr + 9)))
            rnd2(R, fr + 8, fr + 9, fr + 10)
            R.op("v_mov_b32 %s, %s" % (vr(fr + 16), vr(fr + 8)))
            R.op("v_mov_b32 %s, %s" % (vr(fr + 17), vr(fr)))
            R.op("v_mov_b32 %s, %s" % (vr(fr + 18), vr(fr + 9)))
            R.op("v_mov_b32 %s, %s" % (vr(fr + 19), vr(fr + 1)))
            R.op("ds_write_b128 %s, %s" % (vr(t0), vr(fr + 16, 4)))
            R.op("s_waitcnt lgkmcnt(0)")
    else:
        srd(R, sR, 8, WS_X1, ACT_BYTES)
        srd(R, sO, 6, 0, ACT_BYTES)
        srd(R, sM, 8, WS_MOD, 6 * D * 4)
    ex = {-1: [R.l]}
    G = []
    for j in range(4):
        G.append(["buffer_load_dwordx4 %s, %s, %s, s%d offen" % (vr(res + 4 * j, 4), vr(vRO), sr(sR, 4), 40 + j)])
    if is_wo:
        for k in range(4):
            G.append(["s_mov_b32 s44, %d" % (16384 * k),
                      "buffer_load_dwordx4 %s, %s, %s, s44 offen" % (vr(gt + 8 * k, 4), vr(vGO), sr(sP, 4)),
                      "buffer_load_dwordx4 %s, %s, %s, s44 offen offset:16" % (vr(gt + 8 * k + 4, 4), vr(vGO), sr(sP, 4))])
            if f2:
                G.append(["s_mov_b32 s44, %d" % (16384 * k + 8192),
                          "buffer_load_dwordx4 %s, %s, %s, s44 offen" % (vr(gt2 + 8 * k, 4), vr(vGO), sr(sP, 4)),
                          "buffer_load_dwordx4 %s, %s, %s, s44 offen offset:16" % (vr(gt2 + 8 * k + 4, 4), vr(vGO), sr(sP, 4))])
    else:
        G.append(["s_movk_i32 s44, %d" % (5 * 4096),
                  "buffer_load_dwordx4 %s, %s, %s, s44 offen" % (vr(gt, 4), vr(vGO), sr(sM, 4)),
                  "buffer_load_dwordx4 %s, %s, %s, s44 offen offset:16" % (vr(gt + 4, 4), vr(vGO), sr(sM, 4))])
    ex[2 * c.tail_body + 1] = G
    gemm_compute(A, c, L, ex)
    A.op("s_waitcnt vmcnt(0)")
    if is_wo:
        for x in range(0, 8, 2):
            A.op("v_pk_add_f32 %s, %s, %s" % (vr(gt + x, 2), vr(gt + x, 2), vr(gt + 8 + x, 2)))
            A.op("v_pk_add_f32 %s, %s, %s" % (vr(gt + 16 + x, 2), vr(gt + 16 + x, 2), vr(gt + 24 + x, 2)))
        for x in range(0, 8, 2):
            A.op("v_pk_add_f32 %s, %s, %s" % (vr(gt + x, 2), vr(gt + x, 2), vr(gt + 16 + x, 2)))
        for d in range(4):
            rnd2(A, gt + 2 * d, gt + 2 * d + 1, gt + 8 + d)
    if f2:
        for x in range(0, 8, 2):
            A.op("v_pk_add_f32 %s, %s, %s" % (vr(gt2 + x, 2), vr(gt2 + x, 2), vr(gt2 + 8 + x, 2)))
            A.op("v_pk_add_f32 %s, %s, %s" % (vr(gt2 + 16 + x, 2), vr(gt2 + 16 + x, 2), vr(gt2 + 24 + x, 2)))
        for x in range(0, 8, 2):
            A.op("v_pk_add_f32 %s, %s, %s" % (vr(gt2 + x, 2), vr(gt2 + x, 2), vr(gt2 + 16 + x, 2)))
        for d in range(4):
            rnd2(A, gt2 + 2 * d, gt2 + 2 * d + 1, gt2 + 8 + d)
        for x in range(8):
            A.op("v_add_f32 %s, 1.0, %s" % (vr(gt2 + x), vr(gt2 + x)))
        for d in range(4):
            rnd2(A, gt2 + 2 * d, gt2 + 2 * d + 1, gt2 + 8 + d)
    rf = fr
    for j in range(4):
        for d in range(4):
            unpack(A, rf + 8 * j + 2 * d, rf + 8 * j + 2 * d + 1, res + 4 * j + d)
    for j in range(4):
        a0, a1 = acc + 8 * j, acc + 8 * j + 4
        for r in range(4):
            A.op("v_permlane16_swap_b32 %s, %s" % (vr(a0 + r), vr(a1 + r)))
    for j in range(4):
        a0 = acc + 8 * j
        for x in range(0, 8, 2):
            A.op("v_pk_fma_f32 %s, %s, %s, %s" % (vr(rf + 8 * j + x, 2), vr(a0 + x, 2), vr(gt + x, 2), vr(rf + 8 * j + x, 2)))
        for d in range(4):
            A.op("v_cvt_pk_bf16_f32 %s, %s, %s" % (vr(res + 4 * j + d), vr(rf + 8 * j + 2 * d), vr(rf + 8 * j + 2 * d + 1)))
        A.op("buffer_store_dwordx4 %s, %s, %s, s%d offen" % (vr(res + 4 * j, 4), vr(vRO), sr(sO, 4), 40 + j))
    if f2:
        for j in range(4):
            for d in range(4):
                unpack(A, rf + 8 * j + 2 * d, rf + 8 * j + 2 * d + 1, res + 4 * j + d)
        yp = gt2 + 8
        for j in range(4):
            for x in range(0, 8, 2):
                A.op("v_pk_mul_f32 %s, %s, %s" % (vr(acc + 8 * j + x, 2), vr(rf + 8 * j + x, 2), vr(gt2 + x, 2)))
            for d in range(4):
                A.op("v_cvt_pk_bf16_f32 %s, %s, %s" % (vr(yp + 4 * j + d), vr(acc + 8 * j + 2 * d), vr(acc + 8 * j + 2 * d + 1)))
            A.op("buffer_store_dwordx4 %s, %s, s[72:75], s%d offen" % (vr(yp + 4 * j, 4), vr(vYO), 68 + j))
        mu = [gt + 2 * j for j in range(4)]
        tt = [gt + 8 + j for j in range(4)]
        for j in range(4):
            A.op("v_pk_add_f32 %s, %s, %s" % (vr(acc + 8 * j, 2), vr(rf + 8 * j, 2), vr(rf + 8 * j + 2, 2)))
            A.op("v_pk_add_f32 %s, %s, %s" % (vr(acc + 8 * j + 2, 2), vr(rf + 8 * j + 4, 2), vr(rf + 8 * j + 6, 2)))
        for j in range(4):
            A.op("v_pk_add_f32 %s, %s, %s" % (vr(acc + 8 * j, 2), vr(acc + 8 * j, 2), vr(acc + 8 * j + 2, 2)))
        for j in range(4):
            A.op("v_add_f32 %s, %s, %s" % (vr(mu[j]), vr(acc + 8 * j), vr(acc + 8 * j + 1)))
        xgroup_reduce_n(A, mu, tt, "v_add_f32")
        for j in range(4):
            A.op("v_mul_f32 %s, %s, %s" % (vr(mu[j]), f32hex(1.0 / 32), vr(mu[j])))
        for x in range(8):
            for j in range(4):
                A.op("v_sub_f32 %s, %s, %s" % (vr(rf + 8 * j + x), vr(rf + 8 * j + x), vr(mu[j])))
        for x in range(8):
            for j in range(4):
                if x == 0:
                    A.op("v_mul_f32 %s, %s, %s" % (vr(mu[j] + 1), vr(rf + 8 * j), vr(rf + 8 * j)))
                else:
                    A.op("v_fmac_f32 %s, %s, %s" % (vr(mu[j] + 1), vr(rf + 8 * j + x), vr(rf + 8 * j + x)))
        xgroup_reduce_n(A, [m + 1 for m in mu], tt, "v_add_f32")
        A.op("v_lshrrev_b32 %s, 4, v1" % vr(t0))
        for j in range(1, 4):
            A.op("v_cmp_eq_u32 vcc, %d, %s" % (j, vr(t0)))
            A.op("v_cndmask_b32 %s, %s, %s, vcc" % (vr(mu[0]), vr(mu[0]), vr(mu[j])))
            A.op("v_cndmask_b32 %s, %s, %s, vcc" % (vr(mu[0] + 1), vr(mu[0] + 1), vr(mu[j] + 1)))
        A.op("buffer_store_dwordx2 %s, %s, s[76:79], 0 offen" % (vr(mu[0], 2), vr(vSO)))
    A.op("s_branch %s_fin" % L)
    A.label(L + "_L")
    A.hist = []
    A.op("s_sub_u32 %s, %s, 4" % (sr(s_w), sr(s_w)))
    A.op("s_mov_b32 %s, 0" % sr(ring.s_wr))
    A.op("s_mov_b32 %s, 0" % sr(s_kx))
    A.op("s_mov_b32 %s, 0" % sr(s_kw))
    A.op("s_lshl_b32 %s, %s, 12" % (sr(s_l[0]), sr(s_w)))
    for e in range(1, 4):
        A.op("s_add_u32 %s, %s, %d" % (sr(s_l[e]), sr(s_l[0]), 1024 * e))
    A.op("s_lshl_b32 %s, %s, 11" % (sr(s_l[4]), sr(s_w)))
    A.op("s_add_u32 %s, %s, %d" % (sr(s_l[4]), sr(s_l[4]), WB))
    A.op("s_add_u32 %s, %s, 1024" % (sr(s_l[5]), sr(s_l[4])))
    A.op("s_lshl_b32 s45, %s, 5" % sr(s_w))
    A.op("s_add_u32 s45, s45, %s" % sr(s_m0))
    xdma_offsets(A, vX, 4, 45, XROW, tmp, 44)
    A.op("v_lshrrev_b32 %s, 3, v1" % vr(t0))
    A.op("s_lshl_b32 s44, %s, 4" % sr(s_w))
    A.op("v_add_u32 %s, s44, %s" % (vr(t0), vr(t0)))
    A.op("v_lshlrev_b32 %s, 11, %s" % (vr(t0), vr(t0)))
    A.op("s_lshl_b32 s44, %s, 1" % sr(s_n0))
    A.op("v_add_u32 %s, s44, %s" % (vr(t0), vr(t0)))
    A.op("v_bfe_u32 %s, v1, 4, 1" % vr(t1))
    A.op("v_lshlrev_b32 %s, 1, %s" % (vr(t1), vr(t1)))
    A.op("v_and_b32 %s, 7, v1" % vr(t2))
    A.op("v_xor_b32 %s, %s, %s" % (vr(t1), vr(t1), vr(t2)))
    A.op("v_lshl_add_u32 %s, %s, 4, %s" % (vr(vW[0]), vr(t1), vr(t0)))
    A.op("v_xor_b32 %s, 4, %s" % (vr(t1), vr(t1)))
    A.op("v_lshl_add_u32 %s, %s, 4, %s" % (vr(vW[1]), vr(t1), vr(t0)))
    A.op("v_add_u32 %s, %d, %s" % (vr(vW[1]), 8 * 2048, vr(vW[1])))
    A.op("s_waitcnt lgkmcnt(0)")
    srd(A, sX, 8, x_off, x_bytes)
    srd(A, sW, 4, 0, K * D * 2)
    ex = {}
    vF, vFo, vpf, vpd = acc, acc + 4, acc + 5, acc + 6
    npf = 0
    if is_wo:
        R = Rec()
        srd(R, sP, 8, WS_P2, 4 * 4096 * 4)
        srd(R, sM, 8, WS_MOD, 6 * D * 4)
        R.op("v_and_b32 %s, 15, v0" % vr(vFo))
        R.op("s_lshl_b32 s44, s2, 4")
        R.op("v_add_lshl_u32 %s, %s, s44, 2" % (vr(vFo), vr(vFo)))
        for k in range(4):
            R.op("s_mov_b32 s44, %d" % (16384 * k))
            R.op("buffer_load_dword %s, %s, %s, s44 offen" % (vr(vF + k), vr(vFo), sr(sP, 4)))
        R.op("v_and_b32 %s, 255, v0" % vr(vpf))
        R.op("s_lshl_b32 s44, s2, 8")
        R.op("v_add_lshl_u32 %s, %s, s44, 6" % (vr(vpf), vr(vpf)))
        if f2:
            wd, tv, au, ut = acc + 8, 112, 128, 144
            vtid, vgw, vtb = 152, 153, 154
            R.op("v_and_b32 %s, 255, v0" % vr(vtid))
            R.op("s_cmp_ge_u32 s2, 112")
            R.op("s_cselect_b32 s44, 112, 0")
            R.op("s_cselect_b32 s45, 1, 0")
            R.op("s_sub_u32 s44, s2, s44")
            R.op("s_cmp_ge_u32 s44, 56")
            R.op("s_cselect_b32 s72, s66, s64")
            R.op("s_cselect_b32 s73, s67, s65")
            R.op("s_cselect_b32 s46, 56, 0")
            R.op("s_sub_u32 s46, s44, s46")
            R.op("s_cmp_ge_u32 s2, 224")
            R.op("s_cselect_b32 s74, 0, 0x%x" % FF_BYTES)
            R.op("s_mov_b32 s75, 0x20000")
            R.op("s_lshl_b32 s47, s44, 8")
            R.op("s_mul_i32 s80, s45, %d" % (2 * 7168 * 4))
            R.op("s_add_u32 s80, s80, s47")
            R.op("v_lshrrev_b32 %s, 3, %s" % (vr(vtb), vr(vtid)))
            R.op("s_lshl_b32 s47, s45, 9")
            R.op("v_add_u32 %s, s47, %s" % (vr(vgw), vr(vtb)))
            R.op("s_movk_i32 s47, 7168")
            R.op("v_mul_lo_u32 %s, s47, %s" % (vr(vgw), vr(vgw)))
            R.op("v_and_b32 %s, 7, v0" % vr(ut))
            R.op("v_lshl_add_u32 %s, %s, 4, %s" % (vr(vgw), vr(ut), vr(vgw)))
            R.op("s_lshl_b32 s47, s46, 7")
            R.op("v_add_u32 %s, s47, %s" % (vr(vgw), vr(vgw)))
            R.op("v_lshlrev_b32 %s, 3, %s" % (vr(vtb), vr(vtb)))
            R.op("v_add_u32 %s, %d, %s" % (vr(vtb), TAB2, vr(vtb)))
            for i in range(16):
                R.op("s_mov_b32 s44, 0x%x" % (i * 32 * 7168))
                R.op("buffer_load_dwordx4 %s, %s, s[72:75], s44 offen" % (vr(wd + 4 * i, 4), vr(vgw)))
            npf = 16
            ex[-1] = [["v_mov_b32 %s, %d" % (vr(ut), RED2 + 2048), "v_mov_b32 %s, 0" % vr(ut + 1),
                       "ds_write_b32 %s, %s" % (vr(ut), vr(ut + 1))]]
        elif PF_FF[0] > 0:
            npf += prefetch(R, 64, 0, PF_FF[0], 4 * MB, vpf, vpd, sP, 44)
            npf += prefetch(R, 66, 0, PF_FF[0], 4 * MB, vpf, vpd, sP, 44)
        ex[c.tail_body] = [R.l]
    gemm_loader(A, c, L, ex)
    if is_wo:
        A.op("s_waitcnt vmcnt(%d)" % npf)
        A.op("v_add_f32 %s, %s, %s" % (vr(vF), vr(vF), vr(vF + 1)))
        A.op("v_add_f32 %s, %s, %s" % (vr(vF + 2), vr(vF + 2), vr(vF + 3)))
        A.op("v_add_f32 %s, %s, %s" % (vr(vF), vr(vF), vr(vF + 2)))
        rnd1(A, vF, vF + 1)
        A.op("s_lshr_b32 s44, s2, 6")
        A.op("s_cmp_eq_u32 s44, 2")
        A.op("s_cselect_b32 s44, 1.0, 0")
        A.op("v_add_f32 %s, s44, %s" % (vr(vF), vr(vF)))
        rnd1(A, vF, vF + 1)
        A.op("s_movk_i32 s44, 8192")
        A.op("s_movk_i32 s45, 272")
        A.op("v_cmp_gt_u32 vcc, s45, v0")
        A.op("s_and_saveexec_b64 s[46:47], vcc")
        A.op("s_cbranch_execz %s_fsk" % L)
        A.op("buffer_store_dword %s, %s, %s, s44 offen" % (vr(vF), vr(vFo), sr(sM, 4)))
        A.label(L + "_fsk")
        A.op("s_mov_b64 exec, -1")
        if f2:
            A.op("s_cmp_ge_u32 s2, 224")
            A.op("s_cbranch_scc1 %s_fin" % L)
            for hf in range(2):
                for i in range(8):
                    A.op("ds_read_b64 %s, %s offset:%d" % (vr(tv + 2 * i, 2), vr(vtb), 256 * (8 * hf + i)))
                A.op("s_waitcnt lgkmcnt(0)")
                for i in range(8):
                    ii = 8 * hf + i
                    A.op("s_waitcnt vmcnt(%d)" % (15 - ii))
                    for d in range(4):
                        unpack(A, ut + 2 * d, ut + 2 * d + 1, wd + 4 * ii + d)
                    for x in range(8):
                        if ii == 0:
                            A.op("v_mul_f32 %s, %s, %s" % (vr(au + x), vr(tv + 2 * i), vr(ut + x)))
                            A.op("v_mul_f32 %s, %s, %s" % (vr(au + 8 + x), vr(tv + 2 * i + 1), vr(ut + x)))
                        else:
                            A.op("v_fmac_f32 %s, %s, %s" % (vr(au + x), vr(tv + 2 * i), vr(ut + x)))
                            A.op("v_fmac_f32 %s, %s, %s" % (vr(au + 8 + x), vr(tv + 2 * i + 1), vr(ut + x)))
            for x in range(16):
                A.op("v_add_f32_dpp %s, %s, %s row_ror:8%s" % (vr(au + x), vr(au + x), vr(au + x), DPP))
            xgroup_reduce_n(A, [au + x for x in range(16)], [tv + x for x in range(16)], "v_add_f32")
            A.op("s_lshl_b32 s44, %s, 9" % sr(s_w))
            A.op("s_add_u32 s44, s44, %d" % RED2)
            A.op("v_and_b32 %s, 7, v0" % vr(ut))
            A.op("v_lshl_add_u32 %s, %s, 5, s44" % (vr(ut), vr(ut)))
            for q in range(4):
                A.op("ds_write_b128 %s, %s offset:%d" % (vr(ut), vr(au + 4 * q, 4), 256 * (q >> 1) + 16 * (q & 1)))
            A.op("v_mov_b32 %s, %d" % (vr(ut + 1), RED2 + 2048))
            A.op("v_mov_b32 %s, 1" % vr(ut + 2))
            A.op("s_waitcnt lgkmcnt(0)")
            A.op("v_cmp_eq_u32 vcc, 0, v1")
            A.op("s_and_saveexec_b64 s[46:47], vcc")
            A.op("ds_add_rtn_u32 %s, %s, %s" % (vr(ut + 3), vr(ut + 1), vr(ut + 2)))
            A.op("s_waitcnt lgkmcnt(0)")
            A.op("v_readfirstlane_b32 s44, %s" % vr(ut + 3))
            A.op("s_mov_b64 exec, -1")
            A.op("s_cmp_lg_u32 s44, 3")
            A.op("s_cbranch_scc1 %s_fin" % L)
            srd(A, 72, 8, WS_UB, 4 * 7168 * 4)
            A.op("v_lshlrev_b32 %s, 2, v1" % vr(ut))
            A.op("v_add_u32 %s, %d, %s" % (vr(ut + 1), RED2, vr(ut)))
            for w in range(4):
                A.op("ds_read_b32 %s, %s offset:%d" % (vr(au + w), vr(ut + 1), 512 * w))
                A.op("ds_read_b32 %s, %s offset:%d" % (vr(au + 4 + w), vr(ut + 1), 512 * w + 256))
            A.op("s_waitcnt lgkmcnt(0)")
            for b0 in (au, au + 4):
                A.op("v_add_f32 %s, %s, %s" % (vr(b0), vr(b0), vr(b0 + 1)))
                A.op("v_add_f32 %s, %s, %s" % (vr(b0 + 2), vr(b0 + 2), vr(b0 + 3)))
                A.op("v_add_f32 %s, %s, %s" % (vr(b0), vr(b0), vr(b0 + 2)))
            A.op("buffer_store_dword %s, %s, s[72:75], s80 offen" % (vr(au), vr(ut)))
            A.op("s_add_u32 s80, s80, %d" % (7168 * 4))
            A.op("buffer_store_dword %s, %s, s[72:75], s80 offen" % (vr(au + 4), vr(ut)))
    A.label(L + "_fin")
    end_kernel(A, L, 256, 512, (RED2 + 2304) if f2 else ring.end, V.n, 84)


def k_qkv3(A):
    L = "qkv_kernel"
    begin_kernel(A, L, 256)
    c = Loop()
    c.n = 16
    WB = 144 * 128
    ring = Ring(0, WB + 64 * 384, 3, 34, 35)
    c.s_cnt = 36
    c.fill_frac = opt("QKV_FILL", 0.75)
    c.w_hoff = 32 * 24 * 16
    V = Regs(8)
    acc = V.get(112, 4)

    def aQ(b, tau):
        return acc + 4 * ((b - 1) * 2 + tau)

    def aK(b, tau):
        return acc + 32 + 4 * (b * 2 + tau)

    def aV(b, tau):
        return acc + 72 + 4 * (b * 2 + tau)

    SET = 44
    fr = V.get(2 * SET, 4)
    c.set_stride = SET
    xf = [fr + 4 * i for i in range(5)]
    wf = [fr + 20 + 4 * i for i in range(6)]
    cX, cW0, cW1, bX1 = V.get(), V.get(), V.get(), V.get()
    vpf, vpd = V.get(), V.get()
    tmp = V.get(8)
    t0, t1, t2, t3 = tmp, tmp + 1, tmp + 2, tmp + 3
    vX = [acc + e for e in range(5)]
    vW = [acc + 5 + e for e in range(6)]
    sX, sW, sO = 12, 16, 20
    s_w, s_z, s_wm, s_wn, s_m0, s_hp = 28, 29, 30, 31, 32, 33
    s_mask = 24
    s_kx, s_kw = 38, 39
    s_l = list(range(48, 59))
    s_msk = 56
    sPF = 40
    A.op("s_load_dwordx4 s[4:7], s[0:1], %d" % KA_WQKV)
    A.op("s_load_dwordx2 s[8:9], s[0:1], %d" % KA_WS)
    A.op("s_load_dwordx4 s[80:83], s[0:1], %d" % KA_C)
    wave_ids(A, s_w)
    tile_map(A, 1, 3, s_m0, s_hp)
    A.op("s_lshl_b32 %s, %s, 7" % (sr(s_m0), sr(s_m0)))
    items = [dict(ring=ring, srd=sW, voff=vW[e], soff=s_kw, ldsoff=s_l[5 + e], lanes=64) for e in range(6)] + \
            [dict(ring=ring, srd=sX, voff=vX[e], soff=s_kx, ldsoff=s_l[e], lanes=64 if e < 4 else 32) for e in range(5)]
    A.op("s_cmp_ge_u32 %s, 4" % sr(s_w))
    A.op("s_cbranch_scc1 %s_L" % L)
    A.op("s_mov_b32 %s, 0" % sr(s_z))
    A.op("s_lshr_b32 %s, %s, 1" % (sr(s_wm), sr(s_w)))
    A.op("s_and_b32 %s, %s, 1" % (sr(s_wn), sr(s_w)))
    A.op("s_mov_b32 %s, 0" % sr(ring.s_rd))
    bX, bW0, bW1 = bk64_frag_bases(A, V, tmp, s_z, s_wm, s_wn, WB, 24, 44)
    A.op("v_xor_b32 %s, 64, %s" % (vr(bX1), vr(bX)))
    cl_ring_cfg(c, ring, items, [(s_kx, 128), (s_kw, 64 * 6144)], s_mask, cX, bX, bX1, [(cW0, bW0), (cW1, bW1)])
    c.reads = []
    for kind, i in [("x", 0), ("w", 2), ("w", 3), ("w", 4), ("w", 5), ("x", 1), ("w", 0), ("w", 1), ("x", 2), ("x", 3), ("x", 4)]:
        if kind == "x":
            c.reads.append(("b128", xf[i], cX, 2048 * i))
        else:
            seg, tau = i // 2, i % 2
            for t in range(2):
                c.reads.append(("tr", wf[i] + 2 * t, cW1 if tau else cW0, 1536 * t + 128 * seg))
    c.mfma = []
    for b in range(5):
        for tau in range(2):
            c.mfma.append((aK(b, tau), wf[2 + tau], xf[b]))
        for tau in range(2):
            c.mfma.append((aV(b, tau), xf[b], wf[4 + tau]))
        if b:
            for tau in range(2):
                c.mfma.append((aQ(b, tau), wf[tau], xf[b]))
    A.op("v_and_b32 %s, 15, v1" % vr(t0))
    A.op("v_lshrrev_b32 %s, 4, v1" % vr(t1))
    A.op("v_lshlrev_b32 %s, 2, %s" % (vr(t1), vr(t1)))
    A.op("v_sub_u32 %s, %s, %s" % (vr(t1), vr(t0), vr(t1)))
    A.op("s_mov_b32 s44, 0x80000001")
    for r in range(4):
        A.op("v_sub_u32 %s, %d, %s" % (vr(t2), r - 2, vr(t1)))
        A.op("v_and_b32 %s, s44, %s" % (vr(t2), vr(t2)))
        A.op("v_cmp_eq_u32 %s, 0, %s" % (sr(s_msk + 2 * r, 2), vr(t2)))
        A.op("v_subrev_u32 %s, %d, %s" % (vr(t2), r, vr(t1)))
        A.op("v_and_b32 %s, s44, %s" % (vr(t2), vr(t2)))
        A.op("v_cmp_eq_u32 %s, 0, %s" % (sr(s_msk + 8 + 2 * r, 2), vr(t2)))
    vO = V.get()
    A.op("s_lshl_b32 s44, %s, 6" % sr(s_wm))
    A.op("s_add_u32 s47, s44, %s" % sr(s_m0))
    A.op("v_add_u32 %s, s47, %s" % (vr(t0), vr(t0)))
    A.op("s_movk_i32 s44, %d" % XS)
    A.op("v_mul_lo_u32 %s, s44, %s" % (vr(t0), vr(t0)))
    A.op("v_bfe_u32 %s, v1, 4, 1" % vr(t1))
    A.op("v_lshlrev_b32 %s, 4, %s" % (vr(t1), vr(t1)))
    A.op("v_bfe_u32 %s, v1, 5, 1" % vr(t2))
    A.op("v_lshl_or_b32 %s, %s, 3, %s" % (vr(t1), vr(t2), vr(t1)))
    A.op("s_lshl_b32 s44, %s, 6" % sr(s_hp))
    A.op("s_lshl_b32 s45, %s, 5" % sr(s_wn))
    A.op("s_add_u32 s44, s44, s45")
    A.op("v_add_u32 %s, s44, %s" % (vr(t1), vr(t1)))
    A.op("v_lshl_add_u32 %s, %s, 1, %s" % (vr(vO), vr(t1), vr(t0)))
    A.op("s_cmp_eq_u32 s47, 0")
    for r in range(4):
        A.op("s_cselect_b64 %s, 0, %s" % (sr(72 + 2 * r, 2), sr(s_msk + 2 * r, 2)))
    A.op("s_lshl_b32 s44, s2, 8")
    A.op("v_add_lshl_u32 %s, v0, s44, 5" % vr(vpf))
    R = Rec()
    R.op("s_waitcnt lgkmcnt(0)")
    srd(R, sO, 8, WS_O, XP_BYTES)
    ex = {-1: [R.l]}
    b = 0
    for o in range(opt("PF_MOD1", 2) * MB, QKV_BYTES, 2 * MB):
        R = Rec()
        prefetch(R, 4, o, min(QKV_BYTES, o + 2 * MB), 2 * MB, vpf, vpd, sPF, 44)
        ex[b] = [R.l]
        b += 2
    gemm_compute(A, c, L, ex)
    Kf = [fr + 4 * b for b in range(5)]
    Qf = [fr + 20 + 4 * b for b in range(4)]
    VP = [fr + 36, fr + 46]
    for b in range(5):
        for tau in range(2):
            a = aK(b, tau)
            A.op("v_cvt_pk_bf16_f32 %s, %s, %s" % (vr(Kf[b] + 2 * tau), vr(a), vr(a + 1)))
            A.op("v_cvt_pk_bf16_f32 %s, %s, %s" % (vr(Kf[b] + 2 * tau + 1), vr(a + 2), vr(a + 3)))
        if b:
            for tau in range(2):
                a = aQ(b, tau)
                A.op("v_cvt_pk_bf16_f32 %s, %s, %s" % (vr(Qf[b - 1] + 2 * tau), vr(a), vr(a + 1)))
                A.op("v_cvt_pk_bf16_f32 %s, %s, %s" % (vr(Qf[b - 1] + 2 * tau + 1), vr(a + 2), vr(a + 3)))
    QB = (0, 1, 2, 3)
    Sx = [acc + 8 * qb for qb in QB]
    for qb in QB:
        A.op("v_mfma_f32_16x16x32_bf16 %s, %s, %s, 0" % (vr(Sx[qb], 4), vr(Kf[qb], 4), vr(Qf[qb], 4)))
        A.op("v_mfma_f32_16x16x32_bf16 %s, %s, %s, 0" % (vr(Sx[qb] + 4, 4), vr(Kf[qb + 1], 4), vr(Qf[qb], 4)))
    for b in range(5):
        for tau in range(2):
            a = aV(b, tau)
            A.op("v_cvt_pk_bf16_f32 %s, %s, %s" % (vr(VP[tau] + 2 * b), vr(a), vr(a + 1)))
            A.op("v_cvt_pk_bf16_f32 %s, %s, %s" % (vr(VP[tau] + 2 * b + 1), vr(a + 2), vr(a + 3)))
    SC = 32 ** -0.5 * 1.4426950408889634
    A.op("s_mov_b32 s44, %s" % f32hex(SC))
    A.op("s_mov_b32 s45, %s" % f32hex(SC))
    A.op("v_mov_b32 %s, %s" % (vr(t3), f32hex(-1.0e30)))
    Pf = [fr + 56 + 4 * qb for qb in QB]
    Ot = [acc + 32 + 8 * qb for qb in QB]
    mx = [fr + 72 + qb for qb in QB]
    tt = [fr + 76 + qb for qb in QB]
    sm = [fr + 80 + 2 * qb for qb in QB]
    for qb in QB:
        for x in range(0, 8, 2):
            A.op("v_pk_mul_f32 %s, %s, s[44:45]" % (vr(Sx[qb] + x, 2), vr(Sx[qb] + x, 2)))
    for qb in QB:
        s = Sx[qb]
        pm = 72 if qb == 0 else s_msk
        for r in range(4):
            A.op("v_cndmask_b32 %s, %s, %s, %s" % (vr(s + r), vr(t3), vr(s + r), sr(pm + 2 * r, 2)))
            A.op("v_cndmask_b32 %s, %s, %s, %s" % (vr(s + 4 + r), vr(t3), vr(s + 4 + r), sr(s_msk + 8 + 2 * r, 2)))
    for qb in QB:
        s = Sx[qb]
        A.op("v_max3_f32 %s, %s, %s, %s" % (vr(mx[qb]), vr(s), vr(s + 1), vr(s + 2)))
        A.op("v_max3_f32 %s, %s, %s, %s" % (vr(tt[qb]), vr(s + 3), vr(s + 4), vr(s + 5)))
    for qb in QB:
        s = Sx[qb]
        A.op("v_max3_f32 %s, %s, %s, %s" % (vr(mx[qb]), vr(mx[qb]), vr(s + 6), vr(s + 7)))
    for qb in QB:
        A.op("v_max_f32 %s, %s, %s" % (vr(mx[qb]), vr(mx[qb]), vr(tt[qb])))
    xgroup_reduce_n(A, mx, tt, "v_max_f32")
    for qb in QB:
        for x in range(8):
            A.op("v_sub_f32 %s, %s, %s" % (vr(Sx[qb] + x), vr(Sx[qb] + x), vr(mx[qb])))
    for qb in QB:
        for x in range(8):
            A.op("v_exp_f32 %s, %s" % (vr(Sx[qb] + x), vr(Sx[qb] + x)))
    for qb in QB:
        s = Sx[qb]
        A.op("v_pk_add_f32 %s, %s, %s" % (vr(sm[qb], 2), vr(s, 2), vr(s + 2, 2)))
    for x in (4, 6):
        for qb in QB:
            A.op("v_pk_add_f32 %s, %s, %s" % (vr(sm[qb], 2), vr(sm[qb], 2), vr(Sx[qb] + x, 2)))
    for qb in QB:
        A.op("v_add_f32 %s, %s, %s" % (vr(sm[qb]), vr(sm[qb]), vr(sm[qb] + 1)))
    xgroup_reduce_n(A, sm, tt, "v_add_f32")
    for qb in QB:
        A.op("v_rcp_f32 %s, %s" % (vr(sm[qb]), vr(sm[qb])))
    for qb in QB:
        A.op("v_mov_b32 %s, %s" % (vr(sm[qb] + 1), vr(sm[qb])))
    for qb in QB:
        for x in range(0, 8, 2):
            A.op("v_pk_mul_f32 %s, %s, %s" % (vr(Sx[qb] + x, 2), vr(Sx[qb] + x, 2), vr(sm[qb], 2)))
    for qb in QB:
        for d in range(4):
            A.op("v_cvt_pk_bf16_f32 %s, %s, %s" % (vr(Pf[qb] + d), vr(Sx[qb] + 2 * d), vr(Sx[qb] + 2 * d + 1)))
    for qb in QB:
        for tau in range(2):
            A.op("v_mfma_f32_16x16x32_bf16 %s, %s, %s, 0" % (vr(Ot[qb] + 4 * tau, 4), vr(VP[tau] + 2 * qb, 4), vr(Pf[qb], 4)))
    for qb in QB:
        A.op("s_mov_b32 s%d, 0x%x" % (44 + qb, 16 * XS * qb))
    opk = [Kf[qb] for qb in QB]
    for qb in QB:
        for d in range(4):
            A.op("v_cvt_pk_bf16_f32 %s, %s, %s" % (vr(opk[qb] + d), vr(Ot[qb] + 2 * d), vr(Ot[qb] + 2 * d + 1)))
    for qb in QB:
        A.op("v_permlane16_swap_b32 %s, %s" % (vr(opk[qb]), vr(opk[qb] + 2)))
        A.op("v_permlane16_swap_b32 %s, %s" % (vr(opk[qb] + 1), vr(opk[qb] + 3)))
    for qb in QB:
        A.op("buffer_store_dwordx4 %s, %s, %s, s%d offen" % (vr(opk[qb], 4), vr(vO), sr(sO, 4), 44 + qb))
    A.op("s_branch %s_fin" % L)
    A.label(L + "_L")
    A.hist = []
    A.op("s_sub_u32 %s, %s, 4" % (sr(s_w), sr(s_w)))
    A.op("s_mov_b32 %s, -1" % sr(s_mask))
    A.op("s_mov_b32 %s, 0" % sr(s_mask + 1))
    A.op("s_mov_b32 %s, 0" % sr(ring.s_wr))
    A.op("s_mov_b32 %s, 0" % sr(s_kx))
    A.op("s_mov_b32 %s, 0" % sr(s_kw))
    A.op("s_mul_i32 %s, %s, %d" % (sr(s_l[0]), sr(s_w), 288 * 16))
    for e in range(1, 5):
        A.op("s_add_u32 %s, %s, %d" % (sr(s_l[e]), sr(s_l[0]), 1024 * e))
    A.op("s_mul_i32 %s, %s, 6144" % (sr(s_l[5]), sr(s_w)))
    A.op("s_add_u32 %s, %s, %d" % (sr(s_l[5]), sr(s_l[5]), WB))
    for e in range(1, 6):
        A.op("s_add_u32 %s, %s, %d" % (sr(s_l[5 + e]), sr(s_l[5]), 1024 * e))
    A.op("s_lshl_b32 s45, %s, 7" % sr(s_hp))
    A.op("s_mul_i32 s46, %s, %d" % (sr(s_w), 16 * 6144))
    A.op("s_add_u32 s45, s45, s46")
    A.op("s_movk_i32 s44, 6144")
    for e in range(6):
        A.op("v_add_u32 %s, %d, v1" % (vr(t0), 64 * e))
        A.op("v_mul_u32_u24 %s, 0xab, %s" % (vr(t1), vr(t0)))
        A.op("v_lshrrev_b32 %s, 12, %s" % (vr(t1), vr(t1)))
        A.op("v_mul_u32_u24 %s, 24, %s" % (vr(t2), vr(t1)))
        A.op("v_sub_u32 %s, %s, %s" % (vr(t0), vr(t0), vr(t2)))
        A.op("v_and_b32 %s, 2, %s" % (vr(t2), vr(t1)))
        A.op("v_lshrrev_b32 %s, 3, %s" % (vr(t3), vr(t1)))
        A.op("v_lshl_or_b32 %s, %s, 2, %s" % (vr(t2), vr(t3), vr(t2)))
        A.op("v_xor_b32 %s, %s, %s" % (vr(t0), vr(t0), vr(t2)))
        A.op("v_mul_u32_u24 %s, s44, %s" % (vr(t1), vr(t1)))
        A.op("v_lshrrev_b32 %s, 3, %s" % (vr(t2), vr(t0)))
        A.op("v_lshl_add_u32 %s, %s, 11, %s" % (vr(t1), vr(t2), vr(t1)))
        A.op("v_and_b32 %s, 7, %s" % (vr(t0), vr(t0)))
        A.op("v_lshl_add_u32 %s, %s, 4, %s" % (vr(t1), vr(t0), vr(t1)))
        A.op("v_add_u32 %s, s45, %s" % (vr(vW[e]), vr(t1)))
    A.op("s_mul_i32 s46, %s, 36" % sr(s_w))
    A.op("s_add_u32 s45, s46, %s" % sr(s_m0))
    A.op("s_sub_u32 s45, s45, 16")
    xdma_offsets(A, vX, 5, 45, XS, tmp, 44, clamp=True, s_lrow0=46)
    A.op("s_waitcnt lgkmcnt(0)")
    srd(A, sX, 8, WS_H1, XP_BYTES)
    srd(A, sW, 4, 0, QKV_BYTES)
    SCR = ring.end
    vtid, vgw, vgc = acc + 16, acc + 17, acc + 18
    vC, vWd, vacc, vt = acc + 24, acc + 32, acc + 64, acc + 72
    sWM, sCC, sP2 = 60, 64, 68
    R = Rec()
    R.op("v_mov_b32 %s, %d" % (vr(vt), SCR + 1024))
    R.op("v_mov_b32 %s, 0" % vr(vt + 1))
    R.op("ds_write_b32 %s, %s" % (vr(vt), vr(vt + 1)))
    ex = {-1: [R.l]}
    R = Rec()
    R.op("v_and_b32 %s, 255, v0" % vr(vtid))
    R.op("s_lshr_b32 s44, s2, 6")
    R.op("s_lshl_b32 s45, s44, 8")
    R.op("s_and_b32 s46, s2, 63")
    R.op("s_lshl_b32 s47, s46, 7")
    R.op("s_add_u32 s47, s47, 4096")
    R.op("s_lshl_b32 s44, s44, 14")
    R.op("s_lshl_b32 s46, s46, 8")
    R.op("s_add_u32 s84, s44, s46")
    gemv_addr(R, 256, 45, 47, vgw, vgc, vt, 44, vtid)
    srd(R, sWM, 82, 0, WMOD_BYTES)
    srd(R, sCC, 80, 0, 2048)
    srd(R, sP2, 8, WS_P2, 4 * 4096 * 4)
    gemv_issue(R, 256, 8, sCC, sWM, vC, vWd, vgw, vgc, 44)
    R.op("s_lshl_b32 s44, s2, 8")
    R.op("v_add_lshl_u32 %s, %s, s44, 5" % (vr(vpf), vr(vtid)))
    npf = prefetch(R, 6, 0, WO_BYTES, 2 * MB, vpf, vpd, sPF, 44)
    ex[c.tail_body] = [R.l]
    gemm_loader(A, c, L, ex)
    NR = 8
    A.op("s_waitcnt vmcnt(%d)" % (npf + NR))
    silu_bf16_n(A, [vC + i for i in range(NR)], [vt + i for i in range(NR)])
    for i in range(NR):
        A.op("s_waitcnt vmcnt(%d)" % (npf + NR - 1 - i))
        for d in range(4):
            unpack(A, vt + 2 * d, vt + 2 * d + 1, vWd + 4 * i + d)
        for x in range(8):
            if i == 0:
                A.op("v_mul_f32 %s, %s, %s" % (vr(vacc + x), vr(vC + i), vr(vt + x)))
            else:
                A.op("v_fmac_f32 %s, %s, %s" % (vr(vacc + x), vr(vC + i), vr(vt + x)))
    for j in range(8):
        A.op("v_add_f32_dpp %s, %s, %s row_ror:8%s" % (vr(vacc + j), vr(vacc + j), vr(vacc + j), DPP))
    xgroup_reduce_n(A, [vacc + j for j in range(8)], [vt + j for j in range(8)], "v_add_f32")
    A.op("s_lshl_b32 s44, %s, 8" % sr(s_w))
    A.op("s_add_u32 s44, s44, %d" % SCR)
    A.op("v_and_b32 %s, 7, v0" % vr(vt))
    A.op("v_lshl_add_u32 %s, %s, 5, s44" % (vr(vt), vr(vt)))
    A.op("ds_write_b128 %s, %s" % (vr(vt), vr(vacc, 4)))
    A.op("ds_write_b128 %s, %s offset:16" % (vr(vt), vr(vacc + 4, 4)))
    A.op("v_mov_b32 %s, %d" % (vr(vt + 1), SCR + 1024))
    A.op("v_mov_b32 %s, 1" % vr(vt + 2))
    A.op("s_waitcnt lgkmcnt(0)")
    A.op("v_cmp_eq_u32 vcc, 0, v1")
    A.op("s_and_saveexec_b64 s[46:47], vcc")
    A.op("ds_add_rtn_u32 %s, %s, %s" % (vr(vt + 3), vr(vt + 1), vr(vt + 2)))
    A.op("s_waitcnt lgkmcnt(0)")
    A.op("v_readfirstlane_b32 s44, %s" % vr(vt + 3))
    A.op("s_mov_b64 exec, -1")
    A.op("s_cmp_lg_u32 s44, 3")
    A.op("s_cbranch_scc1 %s_fin" % L)
    A.op("v_lshlrev_b32 %s, 2, v1" % vr(vt))
    A.op("v_add_u32 %s, %d, %s" % (vr(vt + 1), SCR, vr(vt)))
    for w in range(4):
        A.op("ds_read_b32 %s, %s offset:%d" % (vr(vacc + w), vr(vt + 1), 256 * w))
    A.op("s_waitcnt lgkmcnt(0)")
    A.op("v_add_f32 %s, %s, %s" % (vr(vacc), vr(vacc), vr(vacc + 1)))
    A.op("v_add_f32 %s, %s, %s" % (vr(vacc + 2), vr(vacc + 2), vr(vacc + 3)))
    A.op("v_add_f32 %s, %s, %s" % (vr(vacc), vr(vacc), vr(vacc + 2)))
    A.op("buffer_store_dword %s, %s, %s, s84 offen" % (vr(vacc), vr(vt), sr(sP2, 4)))
    A.label(L + "_fin")
    end_kernel(A, L, 256, 512, ring.end + 2048, V.n, 86)


def k_down4(A):
    L = "down_kernel"
    begin_kernel(A, L, 256)
    NA = opt("DN_NA", 32)
    NB = 56 - NA
    assert NA % 2 == 0 and NB % 2 == 0
    c = Loop()
    c.n = NB
    WB = 16384
    ring = Ring(0, 32768, opt("DN_NS", 4), 34, 35)
    c.s_cnt = 36
    c.s_extra = 37
    c.fill_frac = opt("DN_FILL", 0.75)
    c.w_hoff = 32 * 256
    V = Regs(8)
    acc = V.get(64, 4)
    SET = 32
    fr = V.get(2 * SET, 4)
    c.set_stride = SET
    xf = [fr + 4 * i for i in range(4)]
    wf = [fr + 16 + 4 * i for i in range(4)]
    vX = [acc + e for e in range(4)]
    vW = [acc + 4 + e for e in range(4)]
    cX, bX0, bX1 = V.get(), V.get(), V.get()
    cW = [V.get() for _ in range(4)]
    bW = [V.get() for _ in range(4)]
    tmp = V.get(8, 2)
    t0, t1, t2, t3 = tmp, tmp + 1, tmp + 2, tmp + 3
    sX, sW, sR, sO, sM, sP, sF = 12, 16, 20, 24, 48, 60, 64
    s_w, s_ks, s_wm, s_wn, s_m0, s_n0, s_tile = 28, 29, 30, 31, 32, 33, 68
    s_kx, s_kw = 38, 39
    s_l = list(range(52, 60))
    A.op("s_load_dwordx2 s[4:5], s[0:1], %d" % KA_W2)
    A.op("s_load_dwordx2 s[8:9], s[0:1], %d" % KA_WS)
    A.op("s_load_dwordx2 s[6:7], s[0:1], %d" % KA_OUT)
    wave_ids(A, s_w)
    A.op("s_and_b32 s3, s2, 7")
    A.op("s_lshr_b32 s44, s2, 3")
    if opt("DN_KSX", 0):
        A.op("s_and_b32 %s, s3, 1" % sr(s_ks))
        A.op("s_bfe_u32 s45, s3, 0x10001")
        A.op("s_lshl_b32 s45, s45, 3")
        A.op("s_and_b32 s46, s44, 7")
        A.op("s_add_u32 s45, s45, s46")
        A.op("s_lshr_b32 s46, s3, 2")
        A.op("s_lshl_b32 s46, s46, 2")
        A.op("s_lshr_b32 s47, s44, 3")
        A.op("s_add_u32 s46, s46, s47")
    else:
        A.op("s_and_b32 %s, s44, 1" % sr(s_ks))
        mbx = opt("DN_MBX", 2)
        jm = 4 - mbx
        A.op("s_and_b32 s45, s3, %d" % ((1 << mbx) - 1))
        A.op("s_lshl_b32 s45, s45, %d" % jm)
        A.op("s_bfe_u32 s46, s44, 0x%x" % ((jm << 16) | 1))
        A.op("s_add_u32 s45, s45, s46")
        A.op("s_lshr_b32 s46, s3, %d" % mbx)
        A.op("s_lshl_b32 s46, s46, %d" % (4 - jm))
        A.op("s_lshr_b32 s47, s44, %d" % (1 + jm))
        A.op("s_add_u32 s46, s46, s47")
    A.op("s_lshl_b32 %s, s45, 7" % sr(s_m0))
    A.op("s_lshl_b32 %s, s46, 7" % sr(s_n0))
    A.op("s_lshl_b32 %s, s45, 3" % sr(s_tile))
    A.op("s_add_u32 %s, %s, s46" % (sr(s_tile), sr(s_tile)))
    items = [dict(ring=ring, srd=sW, voff=vW[e], soff=s_kw, ldsoff=s_l[4 + e], lanes=64) for e in range(4)] + \
            [dict(ring=ring, srd=sX, voff=vX[e], soff=s_kx, ldsoff=s_l[e], lanes=64) for e in range(4)]
    A.op("s_cmp_ge_u32 %s, 4" % sr(s_w))
    A.op("s_cbranch_scc1 %s_L" % L)
    A.op("s_mul_i32 %s, %s, %d" % (sr(c.s_extra), sr(s_ks), NA - NB))
    A.op("s_lshr_b32 %s, %s, 1" % (sr(s_wm), sr(s_w)))
    A.op("s_and_b32 %s, %s, 1" % (sr(s_wn), sr(s_w)))
    A.op("s_mov_b32 %s, 0" % sr(ring.s_rd))
    A.op("v_and_b32 %s, 15, v1" % vr(t0))
    A.op("v_lshrrev_b32 %s, 4, v1" % vr(t1))
    A.op("v_lshrrev_b32 %s, 1, %s" % (vr(t2), vr(t0)))
    A.op("v_xor_b32 %s, %s, %s" % (vr(t2), vr(t2), vr(t1)))
    A.op("v_lshlrev_b32 %s, 4, %s" % (vr(t2), vr(t2)))
    A.op("v_lshl_add_u32 %s, %s, 7, %s" % (vr(t2), vr(t0), vr(t2)))
    A.op("s_lshl_b32 s44, %s, 13" % sr(s_wm))
    A.op("v_add_u32 %s, s44, %s" % (vr(bX0), vr(t2)))
    A.op("v_xor_b32 %s, 64, %s" % (vr(bX1), vr(bX0)))
    A.op("v_bfe_u32 %s, v1, 2, 2" % vr(t0))
    A.op("v_lshl_add_u32 %s, %s, 3, %s" % (vr(t2), vr(t1), vr(t0)))
    A.op("v_lshlrev_b32 %s, 8, %s" % (vr(t2), vr(t2)))
    A.op("v_and_b32 %s, 3, v1" % vr(t3))
    A.op("v_lshl_add_u32 %s, %s, 3, %s" % (vr(t2), vr(t3), vr(t2)))
    A.op("v_add_u32 %s, %d, %s" % (vr(t2), WB, vr(t2)))
    A.op("v_and_b32 %s, 1, %s" % (vr(t1), vr(t1)))
    A.op("v_lshl_or_b32 %s, %s, 2, %s" % (vr(t0), vr(t1), vr(t0)))
    A.op("s_lshl_b32 s44, %s, 2" % sr(s_wn))
    A.op("v_xor_b32 %s, s44, %s" % (vr(t0), vr(t0)))
    for tau in range(4):
        A.op("v_xor_b32 %s, %d, %s" % (vr(t1), tau, vr(t0)))
        A.op("v_lshl_add_u32 %s, %s, 5, %s" % (vr(bW[tau]), vr(t1), vr(t2)))
    cl_ring_cfg(c, ring, items, [(s_kx, 128), (s_kw, 64 * 2048)], 0, cX, bX0, bX1, list(zip(cW, bW)))
    c.reads = []
    for kind, i in [("x", 0), ("w", 0), ("w", 1), ("x", 1), ("w", 2), ("w", 3), ("x", 2), ("x", 3)]:
        if kind == "x":
            c.reads.append(("b128", xf[i], cX, 2048 * i))
        else:
            for t in range(2):
                c.reads.append(("tr", wf[i] + 2 * t, cW[i], 1024 * t))
    c.mfma = [(acc + 4 * (mt * 4 + tau), wf[tau], xf[mt]) for mt in range(4) for tau in range(4)]
    vRO, vGO, vPO, vFO = V.get(), V.get(), V.get(), V.get()
    A.op("v_and_b32 %s, 15, v1" % vr(t0))
    A.op("s_lshl_b32 s44, %s, 6" % sr(s_wm))
    A.op("s_add_u32 s44, s44, %s" % sr(s_m0))
    A.op("v_add_u32 %s, s44, %s" % (vr(t0), vr(t0)))
    A.op("v_lshlrev_b32 %s, 11, %s" % (vr(t0), vr(t0)))
    A.op("v_bfe_u32 %s, v1, 4, 1" % vr(t1))
    A.op("v_lshlrev_b32 %s, 4, %s" % (vr(t1), vr(t1)))
    A.op("v_bfe_u32 %s, v1, 5, 1" % vr(t2))
    A.op("v_lshl_or_b32 %s, %s, 3, %s" % (vr(t1), vr(t2), vr(t1)))
    A.op("s_lshl_b32 s44, %s, 6" % sr(s_wn))
    A.op("s_add_u32 s44, s44, %s" % sr(s_n0))
    A.op("v_add_u32 %s, s44, %s" % (vr(t1), vr(t1)))
    A.op("v_lshl_add_u32 %s, %s, 1, %s" % (vr(vRO), vr(t1), vr(t0)))
    A.op("v_lshlrev_b32 %s, 2, %s" % (vr(vGO), vr(t1)))
    A.op("s_lshl_b32 s44, %s, 2" % sr(s_tile))
    A.op("s_add_u32 s44, s44, %s" % sr(s_w))
    A.op("s_lshl_b32 s45, s44, 14")
    A.op("v_lshl_add_u32 %s, v1, 4, s45" % vr(vPO))
    A.op("s_lshl_b32 s45, s44, 2")
    A.op("v_mov_b32 %s, s45" % vr(vFO))
    res = V.get(32, 4)
    gt = V.get(16, 4)
    for j in range(4):
        A.op("s_mov_b32 s%d, 0x%x" % (40 + j, 0x8000 * j))
        A.op("s_mov_b32 s%d, 0x%x" % (72 + j, 0x1000 * j))
    R = Rec()
    R.op("s_waitcnt lgkmcnt(0)")
    srd(R, sR, 8, WS_X1, ACT_BYTES)
    srd(R, sO, 6, 0, ACT_BYTES)
    srd(R, sM, 8, WS_MOD, 6 * D * 4)
    srd(R, sP, 8, WS_PART, 128 * 65536)
    srd(R, sF, 8, WS_FLAG, 2048)
    R.op("s_cmp_eq_u32 %s, 0" % sr(s_ks))
    R.op("s_cselect_b32 s%d, 0, s%d" % (sR + 2, sR + 2))
    R.op("s_cselect_b32 s%d, 0, s%d" % (sM + 2, sM + 2))
    ex = {-1: [R.l]}
    G = []
    for j in range(4):
        for p in range(2):
            G.append(["buffer_load_dwordx4 %s, %s, %s, s%d offen offset:%d" % (vr(res + 8 * j + 4 * p, 4), vr(vRO), sr(sR, 4), 40 + j, 64 * p)])
    G.append(["s_movk_i32 s44, %d" % (5 * 4096)] +
             ["buffer_load_dwordx4 %s, %s, %s, s44 offen offset:%d" % (vr(gt + 4 * q, 4), vr(vGO), sr(sM, 4), 128 * (q >> 1) + 16 * (q & 1))
              for q in range(4)])
    ex[2 * c.tail_body + 1] = G
    vFl = V.get()
    ex[2 * c.n - opt("DN_EARLY", 3)] = [["buffer_load_dword %s, %s, %s, 0 offen sc1" % (vr(vFl), vr(vFO), sr(sF, 4))]]
    gemm_compute(A, c, L, ex)
    A.op("s_cmp_lg_u32 %s, 0" % sr(s_ks))
    A.op("s_cbranch_scc1 %s_A" % L)
    PB = opt("DN_PB16", 1)
    if PB:
        for q in range(8):
            for d in range(4):
                A.op("v_cvt_pk_bf16_f32 %s, %s, %s" % (vr(fr + 4 * q + d), vr(acc + 8 * q + 2 * d), vr(acc + 8 * q + 2 * d + 1)))
            A.op("buffer_store_dwordx4 %s, %s, %s, s%d offen offset:%d sc1" % (vr(fr + 4 * q, 4), vr(vPO), sr(sP, 4), 72 + (q >> 2), 1024 * (q & 3)))
    else:
        for q in range(16):
            A.op("buffer_store_dwordx4 %s, %s, %s, s%d offen offset:%d sc1" % (vr(acc + 4 * q, 4), vr(vPO), sr(sP, 4), 72 + (q >> 2), 1024 * (q & 3)))
    A.op("v_mov_b32 %s, 1" % vr(t0))
    A.op("s_waitcnt vmcnt(0)")
    A.op("v_cmp_eq_u32 vcc, 0, v1")
    A.op("s_and_saveexec_b64 s[46:47], vcc")
    A.op("buffer_store_dword %s, %s, %s, 0 offen sc1" % (vr(t0), vr(vFO), sr(sF, 4)))
    A.op("s_branch %s_fin" % L)
    A.label(L + "_poll")
    A.op("s_sleep 1")
    A.op("buffer_load_dword %s, %s, %s, 0 offen sc1" % (vr(vFl), vr(vFO), sr(sF, 4)))
    A.label(L + "_A")
    A.op("s_waitcnt vmcnt(0)")
    A.op("v_readfirstlane_b32 s44, %s" % vr(vFl))
    A.op("s_cmp_lg_u32 s44, 1")
    A.op("s_cbranch_scc1 %s_poll" % L)
    A.op("s_nop 7")
    for q in range(8 if PB else 16):
        A.op("buffer_load_dwordx4 %s, %s, %s, s%d offen offset:%d sc1" % (vr(fr + 4 * q, 4), vr(vPO), sr(sP, 4), 72 + (q >> 2), 1024 * (q & 3)))
    rf = tmp
    for j in range(4):
        for p in range(2):
            q0 = 4 * j + 2 * p
            a0, a1 = acc + 4 * q0, acc + 4 * q0 + 4
            if PB:
                A.op("s_waitcnt vmcnt(7)")
                pq = fr + 4 * (2 * j + p)
                up = fr + 32 + 8 * ((2 * j + p) & 3)
                for d in range(4):
                    unpack(A, up + 2 * d, up + 2 * d + 1, pq + d)
                for x in range(0, 8, 2):
                    A.op("v_pk_add_f32 %s, %s, %s" % (vr(a0 + x, 2), vr(a0 + x, 2), vr(up + x, 2)))
            else:
                A.op("s_waitcnt vmcnt(%d)" % (14 - q0 + (2 * j + p)))
                for x in range(0, 8, 2):
                    A.op("v_pk_add_f32 %s, %s, %s" % (vr(a0 + x, 2), vr(a0 + x, 2), vr(fr + 4 * q0 + x, 2)))
            rr = res + 8 * j + 4 * p
            for d in range(4):
                unpack(A, rf + 2 * d, rf + 2 * d + 1, rr + d)
            for r in range(4):
                A.op("v_permlane16_swap_b32 %s, %s" % (vr(a0 + r), vr(a1 + r)))
            for x in range(0, 8, 2):
                A.op("v_pk_fma_f32 %s, %s, %s, %s" % (vr(rf + x, 2), vr(a0 + x, 2), vr(gt + 8 * p + x, 2), vr(rf + x, 2)))
            for d in range(4):
                A.op("v_cvt_pk_bf16_f32 %s, %s, %s" % (vr(rr + d), vr(rf + 2 * d), vr(rf + 2 * d + 1)))
            A.op("buffer_store_dwordx4 %s, %s, %s, s%d offen offset:%d" % (vr(rr, 4), vr(vRO), sr(sO, 4), 40 + j, 64 * p))
    A.op("s_branch %s_fin" % L)
    A.label(L + "_L")
    A.hist = []
    A.op("s_mul_i32 %s, %s, %d" % (sr(c.s_extra), sr(s_ks), (NA - NB) // 2))
    A.op("s_sub_u32 %s, %s, 4" % (sr(s_w), sr(s_w)))
    A.op("s_mov_b32 %s, 0" % sr(ring.s_wr))
    A.op("s_cmp_eq_u32 %s, 0" % sr(s_ks))
    A.op("s_cselect_b32 %s, %d, 0" % (sr(s_kx), NA * 128))
    A.op("s_cselect_b32 %s, 0x%x, 0" % (sr(s_kw), NA * 64 * 2048))
    A.op("s_lshl_b32 %s, %s, 12" % (sr(s_l[0]), sr(s_w)))
    for e in range(1, 8):
        A.op("s_add_u32 %s, %s, %d" % (sr(s_l[e]), sr(s_l[0]), 1024 * (e & 3) + WB * (e >> 2)))
    A.op("s_lshl_b32 s45, %s, 5" % sr(s_w))
    A.op("s_add_u32 s45, s45, %s" % sr(s_m0))
    xdma_offsets(A, vX, 4, 45, HS, tmp, 44)
    A.op("v_lshrrev_b32 %s, 4, v1" % vr(t1))
    A.op("s_lshl_b32 s44, %s, 4" % sr(s_w))
    A.op("v_add_u32 %s, s44, %s" % (vr(t0), vr(t1)))
    A.op("v_lshlrev_b32 %s, 11, %s" % (vr(t0), vr(t0)))
    A.op("s_lshl_b32 s44, %s, 1" % sr(s_n0))
    A.op("v_add_u32 %s, s44, %s" % (vr(t0), vr(t0)))
    A.op("v_lshlrev_b32 %s, 1, %s" % (vr(t1), vr(t1)))
    A.op("v_and_b32 %s, 15, v1" % vr(t2))
    if "noswz" in DBG:
        A.op("v_mov_b32 %s, %s" % (vr(t1), vr(t2)))
    else:
        A.op("v_xor_b32 %s, %s, %s" % (vr(t1), vr(t1), vr(t2)))
    A.op("v_lshl_add_u32 %s, %s, 4, %s" % (vr(vW[0]), vr(t1), vr(t0)))
    A.op("v_add_u32 %s, %d, %s" % (vr(vW[1]), 4 * 2048, vr(vW[0])))
    if "noswz" not in DBG:
        A.op("v_xor_b32 %s, 8, %s" % (vr(t1), vr(t1)))
    A.op("v_lshl_add_u32 %s, %s, 4, %s" % (vr(vW[2]), vr(t1), vr(t0)))
    A.op("v_add_u32 %s, %d, %s" % (vr(vW[2]), 8 * 2048, vr(vW[2])))
    A.op("v_add_u32 %s, %d, %s" % (vr(vW[3]), 4 * 2048, vr(vW[2])))
    A.op("s_waitcnt lgkmcnt(0)")
    srd(A, sX, 8, WS_HH, HH_BYTES)
    srd(A, sW, 4, 0, FF_BYTES)
    gemm_loader(A, c, L, {})
    A.label(L + "_fin")
    end_kernel(A, L, 256, 512, ring.end, V.n, 80)


def k_touch(A, L, which):
    begin_kernel(A, L, 256)
    A.op("s_load_dwordx2 s[4:5], s[0:1], %d" % (KA_W2 if which == "w2" else KA_WS))
    A.op("s_lshl_b32 s3, s2, 9")
    A.op("v_add_lshl_u32 v1, v0, s3, 5")
    A.op("s_waitcnt lgkmcnt(0)")
    if which == "w2":
        prefetch(A, 4, 0, FF_BYTES, 4 * MB, 1, 2, 8, 3)
    else:
        prefetch(A, 4, WS_HH, WS_HH + HH_BYTES, 4 * MB, 1, 2, 8, 3)
    end_kernel(A, L, 256, 512, 0, 8, 16)


def finish(A, dst):
    ref = open(os.path.join(os.path.dirname(os.path.abspath(__file__)), "..", NAME + ".s.ref")).read()
    head = [l for l in ref.splitlines() if l.startswith(";") and "@launch" not in l]
    out = list(head)
    for (L, g, b, lds, nv, ns) in KERNELS:
        out.append("; @launch kernel=%s grid=(%d,1,1) block=(%d,1,1) lds=%d" % (L, g, b, lds))
    out.append('.amdgcn_target "amdgcn-amd-amdhsa--gfx950"')
    out.append(".text")
    out.append(A.text())
    out.append('.section .rodata,"a"')
    for (L, g, b, lds, nv, ns) in KERNELS:
        nv4 = (nv + 3) // 4 * 4
        out.append(".p2align 6")
        out.append(".amdhsa_kernel %s" % L)
        out.append("  .amdhsa_next_free_vgpr %d" % nv4)
        out.append("  .amdhsa_next_free_sgpr %d" % ns)
        out.append("  .amdhsa_accum_offset %d" % nv4)
        out.append("  .amdhsa_group_segment_fixed_size 0")
        out.append("  .amdhsa_kernarg_size 96")
        out.append("  .amdhsa_user_sgpr_count 2")
        out.append("  .amdhsa_user_sgpr_kernarg_segment_ptr 1")
        out.append("  .amdhsa_system_sgpr_workgroup_id_x 1")
        out.append("  .amdhsa_float_denorm_mode_32 3")
        out.append(".end_amdhsa_kernel")
    open(dst, "w").write("\n".join(out) + "\n")
    for k in KERNELS:
        print(k)
    print("nops inserted:", A.nops)


def main():
    A = Asm()
    k_front(A)
    k_mod1(A)
    k_qkv3(A)
    k_proj3(A, "wo_kernel", D, WS_O, XS, KA_WO, True)
    if not F2:
        k_ln2(A)
    k_gateup(A)
    if "touchw2" in DBG:
        k_touch(A, "touchw_kernel", "w2")
    if "touchhh" in DBG:
        k_touch(A, "touchh_kernel", "hh")
    if "olddown" in DBG:
        k_proj3(A, "down_kernel", F, WS_HH, HS, KA_W2, False)
    else:
        k_down4(A)
    dst = sys.argv[1] if len(sys.argv) > 1 else os.path.join(os.path.dirname(os.path.abspath(__file__)), "..", NAME + ".s")
    finish(A, dst)


if __name__ == "__main__":
    main()
```

```python
import os
import sys

sys.path.insert(0, os.path.dirname(os.path.abspath(__file__)))
import gen2
from gen2 import *
from engine import Stream, ent, merge

WS_FLG = WS_FLAG + 4096
HH_RB = 112 * 1024 + opt("HH_PAD", 0)
HHF_BYTES = 128 * HH_RB
SPIN_MAX = 1 << 20
STAMP_REG = {0: 86, 1: 90, 2: 94, 3: 98, 4: 78, 5: 82}


def stampx(S, idx):
    if "stamp" in DBG:
        r = STAMP_REG[idx]
        S.op("s_memtime s[%d:%d]" % (r, r + 1))
        S.op("s_memrealtime s[%d:%d]" % (r + 2, r + 3))


def end_kernel2(A, L, nwg, nthr, lds, nv, ns):
    if "trace" in DBG:
        A.op("s_mov_b64 exec, -1")
        A.op("s_load_dwordx2 s[4:5], s[0:1], %d" % KA_WS)
        A.op("s_waitcnt lgkmcnt(0)")
        srd(A, 8, 4, 66 * MB, MB)
        A.op("s_lshl_b32 s3, s2, 11")
        A.op("v_lshl_add_u32 v1, v0, 2, s3")
        A.op("buffer_store_dword v252, v1, s[8:11], 0 offen")
        nv, ns = 256, 102
    if "stamp" in DBG:
        kidx = len(KERNELS)
        A.op("s_mov_b64 exec, -1")
        A.op("s_waitcnt vmcnt(0)")
        A.op("s_barrier")
        stampx(A, 3)
        A.op("s_load_dwordx2 s[4:5], s[0:1], %d" % KA_WS)
        A.op("s_waitcnt lgkmcnt(0)")
        srd(A, 8, 4, 64 * MB + kidx * 65536, 65536)
        srd(A, 12, 4, 65 * MB, 65536)
        A.op("v_and_b32 v1, 255, v0")
        A.op("v_cmp_eq_u32 vcc, 0, v1")
        A.op("s_and_saveexec_b64 s[6:7], vcc")
        A.op("s_cbranch_execz %s_end" % L)
        A.op("s_lshl_b32 s3, s2, 8")
        A.op("v_lshrrev_b32 v1, 1, v0")
        A.op("v_add_u32 v1, s3, v1")
        for i in range(6):
            for q in range(4):
                A.op("v_mov_b32 v2, s%d" % (STAMP_REG[i] + q))
                A.op("buffer_store_dword v2, v1, s[12:15], 0 offen offset:%d" % (16 * i + 4 * q))
        A.op("v_cmp_eq_u32 vcc, 0, v0")
        A.op("s_and_saveexec_b64 s[6:7], vcc")
        A.op("s_cbranch_execz %s_end" % L)
        A.op("s_lshl_b32 s3, s2, 6")
        A.op("v_mov_b32 v1, s3")
        for i in range(16):
            A.op("v_mov_b32 v2, s%d" % (86 + i))
            A.op("buffer_store_dword v2, v1, s[8:11], 0 offen offset:%d" % (4 * i))
        ns = 102
    A.label(L + "_end")
    A.op("s_endpgm")
    KERNELS.append((L, nwg, nthr, lds, nv, ns))


class Task:
    pass


def ring_adv(sreg, slot, s_lim, s_base):
    def o(x):
        return ("%d" % x[1]) if isinstance(x, tuple) else sr(x)
    return ["s_add_u32 %s, %s, %d" % (sr(sreg), sr(sreg), slot),
            "s_cmp_ge_u32 %s, %s" % (sr(sreg), o(s_lim)),
            "s_cselect_b32 %s, %s, %s" % (sr(sreg), o(s_base), sr(sreg))]


FINE = opt("FINE", 0)


def need(t):
    if FINE:
        return (("w", t + 1), ("x", (t + 1) // 2))
    return (("w", t + 1), ("w", t + 2), ("x", (t + 1) // 2))


def compute(S, T, base, nst, entry=(), extras=None, region=None, last_bar=True):
    extras = extras or {}
    nsub = 2 * nst

    def reads(step):
        par = step & 1
        out = []
        for (kind, dst, addr, off, hoff) in T.reads:
            d = dst + par * T.set_stride
            if kind == "b128":
                out.append("ds_read_b128 %s, %s offset:%d" % (vr(d, 4), vr(addr), off + par * hoff))
            else:
                out.append("ds_read_b64_tr_b16 %s, %s offset:%d" % (vr(d, 2), vr(addr), off + par * hoff))
        return out
    S.add(reads(0))
    S.add(list(entry))
    S.add(T.rsetup(1))
    S.op("s_waitcnt lgkmcnt(0)")
    if T.stamps[0] is not None:
        stampx(S, T.stamps[0])
    nm = len(T.mfma)
    span = max(1, int(nm * T.fill_frac))
    for t in range(nsub):
        last = (t == nsub - 1)
        rd = [] if last or "noread" in DBG else reads(t + 1)
        slots = [[] for _ in range(nm)]
        bar = ((t & 1) or T.fine) and (last_bar or not last)
        first = 1 if bar else 0
        if bar:
            slots[0] += [("w", need(2 * base + t)), "s_barrier"]
            if "trace" in DBG:
                slots[0].append("s_memtime s[80:81]")
        if "trace" in DBG and not (t & 1) and t:
            slots[2] += ["s_mov_b32 m0, s79", "s_add_u32 s79, s79, 1", "v_writelane_b32 v252, s80, m0"]
        for i, f in enumerate(rd):
            slots[min(nm - 1, first + i * (span - first) // len(rd))].append(f)
        if t + 2 < nsub:
            su = T.rsetup(t + 2)
            va = [x for x in su if x.startswith("v_")]
            sa = [x for x in su if not x.startswith("v_")]
            tail = nm - span
            for i, x in enumerate(va):
                slots[span + min(tail - 1, i * tail // len(va))].append(x)
            if sa:
                slots[nm - 2] += sa
        other = list(extras.get(t, []))
        for i, f in enumerate(other):
            slots[min(nm - 1, 1 + i * (nm - 1) // len(other))].append(f)
        o = (t & 1) * T.set_stride
        for i, (acc, a, b) in enumerate(T.mfma):
            cin = "0" if t == 0 else vr(acc, 4)
            if "nomfma" not in DBG or t == 0:
                S.op("v_mfma_f32_16x16x32_bf16 %s, %s, %s, %s" % (vr(acc, 4), vr(a + o, 4), vr(b + o, 4), cin))
            if not (t & 1) and i == nm // 2:
                S.cut(region)
            S.add(slots[i])
        if not last:
            S.op("s_waitcnt lgkmcnt(0)")
    S.cut()
    if T.stamps[1] is not None:
        stampx(S, T.stamps[1])


def quad(m0, voffs, srd_, soff, tag, mod=""):
    g = []
    if "nodma" in DBG and tag[1] > (5 if tag[0] == "w" else 2):
        return g
    for e in range(len(voffs)):
        l = [m0] if e == 0 else []
        l.append(ent("buffer_load_dwordx4 %s, %s, %s offen offset:%d%s lds" % (vr(voffs[e]), sr(srd_, 4), sr(soff), 1024 * e, mod), tag))
        g.append(l)
    return g


def swiglu_chunk(ga, gb, ua, ub, e, pk, s_c, store):
    o = []
    PK = opt("EPI_PK", 0)
    gs = [ga, gb]
    us = [ua, ub]
    for h in range(2):
        if PK:
            for r in (0, 2):
                o.append("v_pk_mul_f32 %s, %s, %s" % (vr(e + 4 * h + r, 2), vr(gs[h] + r, 2), sr(s_c, 2)))
        else:
            for r in range(4):
                o.append("v_mul_f32 %s, %s, %s" % (vr(e + 4 * h + r), sr(s_c), vr(gs[h] + r)))
    for x in range(8):
        o.append("v_exp_f32 %s, %s" % (vr(e + x), vr(e + x)))
    for h in range(2):
        if PK:
            for r in (0, 2):
                o.append("v_pk_mul_f32 %s, %s, %s" % (vr(gs[h] + r, 2), vr(gs[h] + r, 2), vr(us[h] + r, 2)))
        else:
            for r in range(4):
                o.append("v_mul_f32 %s, %s, %s" % (vr(gs[h] + r), vr(gs[h] + r), vr(us[h] + r)))
    if PK:
        for x in range(0, 8, 2):
            o.append("v_pk_add_f32 %s, %s, 1.0 op_sel_hi:[1,0]" % (vr(e + x, 2), vr(e + x, 2)))
    else:
        for x in range(8):
            o.append("v_add_f32 %s, 1.0, %s" % (vr(e + x), vr(e + x)))
    for x in range(8):
        o.append("v_rcp_f32 %s, %s" % (vr(e + x), vr(e + x)))
    for h in range(2):
        if PK:
            for r in (0, 2):
                o.append("v_pk_mul_f32 %s, %s, %s" % (vr(gs[h] + r, 2), vr(gs[h] + r, 2), vr(e + 4 * h + r, 2)))
        else:
            for r in range(4):
                o.append("v_mul_f32 %s, %s, %s" % (vr(gs[h] + r), vr(gs[h] + r), vr(e + 4 * h + r)))
    for h in range(2):
        o.append("v_cvt_pk_bf16_f32 %s, %s, %s" % (vr(pk + 2 * h), vr(gs[h]), vr(gs[h] + 1)))
        o.append("v_cvt_pk_bf16_f32 %s, %s, %s" % (vr(pk + 2 * h + 1), vr(gs[h] + 2), vr(gs[h] + 3)))
    o.append("v_permlane16_swap_b32 %s, %s" % (vr(pk), vr(pk + 2)))
    o.append("v_permlane16_swap_b32 %s, %s" % (vr(pk + 1), vr(pk + 3)))
    o = [[x] for x in o]
    if "noepi" in DBG:
        o = []
    if "plainst" in DBG:
        store = (store[0], store[1].replace(" sc1", ""), store[2])
    if "nostore" not in DBG:
        o.append([store])
    return o


class Work:
    def __init__(self, chunks, rate):
        self.l = [x for c in chunks for x in c]
        self.rate = rate
        self.credit = 0.0

    def take(self, n):
        o, self.l = self.l[:n], self.l[n:]
        return o

    def mix(self, g):
        out = []
        for x in g:
            out.append(x)
            if any(not isinstance(y, str) and y[0] == "v" for y in x):
                self.credit += self.rate
                n = int(self.credit)
                self.credit -= n
                out += self.take(n)
        if opt("ST_END", 1):
            late = [x for x in out if is_late(x)]
            out = [x for x in out if not is_late(x)] + late
        return out


def is_late(x):
    y = x[0]
    return (not isinstance(y, str) and y[0] == "v" and y[2] == "hh") or (isinstance(y, str) and y.endswith("; late"))


def korder(n, period, lead, c, rev=False, t0=None):
    k = list(range(n))
    if lead:
        for t in range(n):
            if (t - c) % period == 0 and (t0 is None or (t >= t0 and t + lead < n)):
                k[t], k[(t + lead) % n] = (t + lead) % n, t
    assert sorted(k) == list(range(n))
    if rev:
        k = [n - 1 - x for x in k]
    return k


def ktable(S, s_tb, s_cls, n, period, lead, skip=0, rev=False, t0=0):
    for c in range(period if lead else 1):
        v = 0
        for i, x in enumerate(korder(n, period, lead, c, rev, t0)[skip:]):
            v |= x << (4 * i)
        if c == 0:
            S.op("s_mov_b32 %s, 0x%x" % (sr(s_tb), v & 0xffffffff))
            S.op("s_mov_b32 %s, 0x%x" % (sr(s_tb + 1), v >> 32))
        else:
            S.op("s_cmp_eq_u32 %s, %d" % (sr(s_cls), c))
            S.op("s_cselect_b32 %s, 0x%x, %s" % (sr(s_tb), v & 0xffffffff, sr(s_tb)))
            S.op("s_cselect_b32 %s, 0x%x, %s" % (sr(s_tb + 1), v >> 32, sr(s_tb + 1)))


def poll_check(S, name, vfl, vfo, sF, soff):
    S.op("s_mov_b32 s3, 0x%x" % SPIN_MAX)
    S.wait("poll")
    S.label(name + "_chk")
    S.op("v_cmp_ne_u32 vcc, 1, %s" % vr(vfl))
    S.op("s_nop 4")
    S.op("s_cbranch_vccz %s_ok" % name)
    S.op("s_sub_u32 s3, s3, 1")
    S.op("s_cbranch_scc1 %s_ok" % name)
    S.op("s_sleep 2")
    S.e.append(("i", "buffer_load_dword %s, %s, %s, %s offen sc1" % (vr(vfl), vr(vfo), sr(sF, 4), sr(soff))))
    S.op("s_waitcnt vmcnt(0)")
    S.op("s_branch %s_chk" % name)
    S.label(name + "_ok")


def flag_store(S, vt, vfo, sF, soff, s_ex):
    S.op("v_mov_b32 %s, 1" % vr(vt))
    S.op("s_mov_b64 exec, 1")
    S.op("buffer_store_dword %s, %s, %s, %s offen sc1" % (vr(vt), vr(vfo), sr(sF, 4), sr(soff)))
    S.op("s_mov_b64 exec, -1")


def k_gd(A):
    L = "gd_kernel"
    SLOT = 49152
    DS = 32768
    A1_, B1_ = opt("DN_A1", 16), opt("DN_B1", 16)
    A0_, B0_ = 32 - A1_, 24 - B1_
    assert A1_ >= A0_ and B1_ >= B0_ and max(A1_, B1_) <= 16 and (A0_ | A1_ | B0_ | B1_) % 4 == 0
    ND = A0_ + B0_
    XSC = " sc1" if opt("HH_SC1", 0) else ""
    sX, sG, sU, sH, sW2, sF, sR, sO, sM, sP, sPF = 12, 16, 20, 24, 28, 32, 36, 40, 44, 48, 52
    s_w, s_wm, s_wn, s_m0, s_nt, s_ks, s_dm, s_dn, s_tile = 56, 57, 58, 59, 60, 61, 62, 63, 64
    s_rd, s_wr, s_cnt, s_kx, s_kw, s_b, s_lim, s_e1, s_e2 = 65, 66, 67, 68, 69, 70, 71, 72, 73
    s_c = 74
    s_t, s_t2 = 76, 77
    s_tb, s_cls, s_kb = 36, 38, 39
    GA_PER, GA_LEAD = opt("GA_PER", 4), opt("GA_LEAD", 1)
    WIDE = opt("WIDE_B", 1)
    GB_PER, GB_LEAD, GB_REV = opt("GB_PER", 3 if WIDE else 4), opt("GB_LEAD", 1), opt("GB_REV", 0)
    s_nb = 3

    def nb_calc(S):
        S.op("s_lshr_b32 s3, %s, 2" % sr(s_nt))
        S.op("s_sub_u32 s3, %s, s3" % sr(s_nt))
        S.op("s_add_u32 s3, s3, 16")
        S.op("s_cmp_ge_u32 s2, 192")

    def idle_srds(S):
        S.op("s_cmp_ge_u32 s2, 192")
        for d in (sX, sG, sU):
            S.op("s_cselect_b32 s%d, 0, s%d" % (d + 2, d + 2))
    D_LEAD = opt("D_LEAD", 1)
    WNT = " nt" if opt("W_NT", 0) else ""

    def g_class(S, per):
        S.op("s_bfe_u32 %s, s2, 0x30003" % sr(s_cls))
        if per != 8:
            S.op("s_lshr_b32 %s, s2, 6" % sr(s_kb))
            S.op("s_add_u32 %s, %s, %s" % (sr(s_cls), sr(s_cls), sr(s_kb)))
        if per == 3:
            S.op("s_mul_i32 %s, %s, 11" % (sr(s_kb), sr(s_cls)))
            S.op("s_lshr_b32 %s, %s, 5" % (sr(s_kb), sr(s_kb)))
            S.op("s_mul_i32 %s, %s, 3" % (sr(s_kb), sr(s_kb)))
            S.op("s_sub_u32 %s, %s, %s" % (sr(s_cls), sr(s_cls), sr(s_kb)))
        else:
            S.op("s_and_b32 %s, %s, %d" % (sr(s_cls), sr(s_cls), per - 1))
    t0, t1, t2, t3 = 2, 3, 4, 5
    begin_kernel(A, L, 256)
    A.op("s_load_dwordx4 s[4:7], s[0:1], %d" % KA_W1)
    A.op("s_load_dwordx2 s[8:9], s[0:1], %d" % KA_WS)
    A.op("s_load_dwordx2 s[10:11], s[0:1], %d" % KA_W2)
    wave_ids(A, s_w)
    if "trace" in DBG:
        A.op("s_mov_b32 s79, 0")
        A.op("v_mov_b32 v252, 0")
    tile_map(A, 1, 3, s_m0, s_nt)
    A.op("s_lshl_b32 %s, %s, 7" % (sr(s_m0), sr(s_m0)))
    A.op("s_cmp_ge_u32 %s, 4" % sr(s_w))
    A.op("s_cbranch_scc1 %s_Q" % L)

    def d_map(S):
        S.op("s_and_b32 s3, s2, 7")
        S.op("s_lshr_b32 %s, s2, 3" % sr(s_t))
        S.op("s_and_b32 %s, %s, 1" % (sr(s_ks), sr(s_t)))
        mbx = opt("DN_MBX", 2)
        jm = 4 - mbx
        S.op("s_and_b32 %s, s3, %d" % (sr(s_dm), (1 << mbx) - 1))
        S.op("s_lshl_b32 %s, %s, %d" % (sr(s_dm), sr(s_dm), jm))
        S.op("s_bfe_u32 %s, %s, 0x%x" % (sr(s_t2), sr(s_t), (jm << 16) | 1))
        S.op("s_add_u32 %s, %s, %s" % (sr(s_dm), sr(s_dm), sr(s_t2)))
        S.op("s_lshr_b32 %s, s3, %d" % (sr(s_dn), mbx))
        S.op("s_lshl_b32 %s, %s, %d" % (sr(s_dn), sr(s_dn), 4 - jm))
        S.op("s_lshr_b32 %s, %s, %d" % (sr(s_t2), sr(s_t), 1 + jm))
        S.op("s_add_u32 %s, %s, %s" % (sr(s_dn), sr(s_dn), sr(s_t2)))
        S.op("s_lshl_b32 %s, %s, 3" % (sr(s_tile), sr(s_dm)))
        S.op("s_add_u32 %s, %s, %s" % (sr(s_tile), sr(s_tile), sr(s_dn)))

    def x_voff(S, vX):
        S.op("s_lshl_b32 %s, %s, 5" % (sr(s_t2), sr(s_w)))
        S.op("s_add_u32 %s, %s, %s" % (sr(s_t2), sr(s_t2), sr(s_m0)))
        xdma_offsets(S, vX, 4, s_t2, XS, t0, s_t)
        for e in range(1, 4):
            S.op("v_subrev_u32 %s, %d, %s" % (vr(vX[e]), 1024 * e, vr(vX[e])))

    def w256_voff(S, vW, pitch, s_colbyte):
        S.op("v_lshrrev_b32 %s, 4, v1" % vr(t1))
        S.op("s_lshl_b32 %s, %s, 4" % (sr(s_t), sr(s_w)))
        S.op("v_add_u32 %s, %s, %s" % (vr(t0), sr(s_t), vr(t1)))
        S.op("s_movk_i32 %s, %d" % (sr(s_t), pitch))
        S.op("v_mul_u32_u24 %s, %s, %s" % (vr(t0), sr(s_t), vr(t0)))
        S.op("v_add_u32 %s, %s, %s" % (vr(t0), sr(s_colbyte), vr(t0)))
        S.op("v_lshlrev_b32 %s, 1, %s" % (vr(t1), vr(t1)))
        S.op("v_and_b32 %s, 15, v1" % vr(t2))
        S.op("v_xor_b32 %s, %s, %s" % (vr(t1), vr(t1), vr(t2)))
        S.op("v_lshl_add_u32 %s, %s, 4, %s" % (vr(vW[0]), vr(t1), vr(t0)))
        S.op("v_add_u32 %s, %d, %s" % (vr(vW[1]), 4 * pitch - 1024, vr(vW[0])))
        S.op("v_xor_b32 %s, 8, %s" % (vr(t1), vr(t1)))
        S.op("v_lshl_add_u32 %s, %s, 4, %s" % (vr(vW[2]), vr(t1), vr(t0)))
        S.op("v_add_u32 %s, %d, %s" % (vr(vW[2]), 8 * pitch - 2048, vr(vW[2])))
        S.op("v_add_u32 %s, %d, %s" % (vr(vW[3]), 4 * pitch - 1024, vr(vW[2])))

    def w256h_voff(S, vW, pitch, s_colbyte):
        S.op("v_lshrrev_b32 %s, 4, v1" % vr(t1))
        S.op("s_lshl_b32 %s, %s, 3" % (sr(s_t), sr(s_w)))
        S.op("v_add_u32 %s, %s, %s" % (vr(t0), sr(s_t), vr(t1)))
        S.op("s_and_b32 %s, %s, 8" % (sr(s_t), sr(s_t)))
        S.op("v_lshl_or_b32 %s, %s, 1, %s" % (vr(t1), vr(t1), sr(s_t)))
        S.op("s_movk_i32 %s, %d" % (sr(s_t), pitch))
        S.op("v_mul_u32_u24 %s, %s, %s" % (vr(t0), sr(s_t), vr(t0)))
        S.op("v_add_u32 %s, %s, %s" % (vr(t0), sr(s_colbyte), vr(t0)))
        S.op("v_and_b32 %s, 15, v1" % vr(t2))
        S.op("v_xor_b32 %s, %s, %s" % (vr(t1), vr(t1), vr(t2)))
        S.op("v_lshl_add_u32 %s, %s, 4, %s" % (vr(vW[0]), vr(t1), vr(t0)))
        S.op("v_add_u32 %s, %d, %s" % (vr(vW[1]), 4 * pitch - 1024, vr(vW[0])))

    def w192_voff(S, vW):
        S.op("v_mul_u32_u24 %s, 43, v1" % vr(t1))
        S.op("v_lshrrev_b32 %s, 9, %s" % (vr(t1), vr(t1)))
        S.op("v_mul_u32_u24 %s, 12, %s" % (vr(t2), vr(t1)))
        S.op("v_sub_u32 %s, v1, %s" % (vr(t2), vr(t2)))
        S.op("s_lshl_b32 %s, %s, 1" % (sr(s_t), sr(s_w)))
        S.op("s_and_b32 %s, %s, 2" % (sr(s_t), sr(s_t)))
        S.op("v_xor_b32 %s, %s, %s" % (vr(t2), sr(s_t), vr(t2)))
        S.op("s_lshl_b32 %s, %s, 3" % (sr(s_t), sr(s_w)))
        S.op("v_add_u32 %s, %s, %s" % (vr(t0), sr(s_t), vr(t1)))
        S.op("s_movk_i32 %s, 7168" % sr(s_t))
        S.op("v_mul_u32_u24 %s, %s, %s" % (vr(t0), sr(s_t), vr(t0)))
        S.op("s_mul_i32 %s, %s, 192" % (sr(s_t), sr(s_nt)))
        S.op("s_add_u32 %s, %s, 4096" % (sr(s_t), sr(s_t)))
        S.op("v_add_u32 %s, %s, %s" % (vr(t0), sr(s_t), vr(t0)))
        S.op("v_lshrrev_b32 %s, 2, %s" % (vr(t1), vr(t1)))
        S.op("v_lshl_or_b32 %s, %s, 31, %s" % (vr(t0), vr(t1), vr(t0)))
        S.op("v_lshl_add_u32 %s, %s, 4, %s" % (vr(vW[0]), vr(t2), vr(t0)))
        S.op("v_add_u32 %s, %d, %s" % (vr(vW[1]), 4 * 7168 - 1024, vr(vW[0])))

    def wb_voff(S, vW):
        if WIDE:
            nb_calc(S)
            S.op("s_lshl_b32 %s, s3, 8" % sr(s_t2))
            w256h_voff(S, vW, 7168, s_t2)
        else:
            w192_voff(S, vW)

    def d_voff(S, vXD, vWD):
        S.op("s_lshl_b32 %s, %s, 3" % (sr(s_t), sr(s_dm)))
        S.op("s_lshl_b32 %s, %s, 1" % (sr(s_t2), sr(s_w)))
        S.op("s_add_u32 %s, %s, %s" % (sr(s_t), sr(s_t), sr(s_t2)))
        S.op("s_mul_i32 %s, %s, %d" % (sr(s_t), sr(s_t), HH_RB))
        S.op("v_lshl_add_u32 %s, v1, 4, %s" % (vr(vXD[0]), sr(s_t)))
        S.op("v_add_u32 %s, %d, %s" % (vr(vXD[1]), HH_RB - 2048, vr(vXD[0])))
        S.op("s_lshl_b32 %s, %s, 8" % (sr(s_t2), sr(s_dn)))
        w256_voff(S, vWD, 2048, s_t2)

    def dma_w(u, vW):
        tag = ("w", u)
        h = u & 1
        g = quad("s_add_u32 m0, %s, %d" % (sr(s_wr), 16384 + 8192 * h), vW, sG, s_kw, tag, WNT) + \
            quad("s_add_u32 m0, %s, %d" % (sr(s_wr), 32768 + 8192 * h), vW, sU, s_kw, tag, WNT)
        if not h:
            g.append(["s_add_u32 %s, %s, 0x%x" % (sr(s_kw), sr(s_kw), 32 * 7168)])
        return g

    def dma_x(st, vX):
        return quad("s_add_u32 m0, %s, %s" % (sr(s_wr), sr(s_b)), vX, sX, s_kx, ("x", st))

    def dma_g(t, vX, vWA, vWB):
        if FINE:
            return dma_u(t + 6, vX, vWA, vWB)
        if t & 1:
            return dma_u(t + 5, vX, vWA, vWB) + dma_u(t + 6, vX, vWA, vWB)
        return []

    def dma_u(u, vX, vWA, vWB):
        if u >= 64:
            return []
        g = []
        if u == 32:
            R = Rec()
            g_class(R, GB_PER)
            ktable(R, s_tb, s_cls, 16, GB_PER, GB_LEAD, 0, GB_REV)
            if WIDE:
                idle_srds(R)
            g.append(R.l)
        if u & 1:
            g += dma_x(u // 2, vX)
        else:
            g.append(["s_and_b32 %s, %s, 15" % (sr(s_kw), sr(s_tb)),
                      "s_lshr_b64 %s, %s, 4" % (sr(s_tb, 2), sr(s_tb, 2)),
                      "s_lshl_b32 %s, %s, 7" % (sr(s_kx), sr(s_kw)),
                      "s_mul_i32 %s, %s, 0x%x" % (sr(s_kw), sr(s_kw), 64 * 7168)])
        g += dma_w(u, vWA if u < 32 else vWB)
        if u & 1:
            g.append(ring_adv(s_wr, SLOT, s_lim, s_b))
        return g

    def dma_d(j, vXD, vWD):
        tag = ("x", 32 + j)
        g = [["s_and_b32 %s, %s, 15" % (sr(s_kw), sr(s_tb)),
              "s_lshr_b64 %s, %s, 4" % (sr(s_tb, 2), sr(s_tb, 2)),
              "s_add_u32 %s, %s, %s" % (sr(s_kw), sr(s_kw), sr(s_kb)),
              "s_lshl_b32 %s, %s, 11" % (sr(s_kx), sr(s_kw)),
              "s_lshl_b32 %s, %s, 17" % (sr(s_kw), sr(s_kw))]]
        g += quad("s_add_u32 m0, %s, 16384" % sr(s_wr), vWD, sW2, s_kw, tag) + \
            quad("s_mov_b32 m0, %s" % sr(s_wr), [vXD[0], vXD[0], vXD[1], vXD[1]], sH, s_kx, tag, XSC)
        g.append(ring_adv(s_wr, DS, s_lim, s_b))
        return g

    def d_table(S, n0, n1, kb0, kb1, skip):
        S.op("s_add_u32 %s, %s, %s" % (sr(s_cls), sr(s_dm), sr(s_dn)))
        S.op("s_and_b32 %s, %s, 3" % (sr(s_cls), sr(s_cls)))
        ktable(S, s_tb, s_cls, n1, 4, D_LEAD, skip)
        if n0 != n1:
            ktable(S, s_kx, s_cls, n0, 4, D_LEAD, skip)
        S.op("s_cmp_eq_u32 %s, 0" % sr(s_ks))
        if n0 != n1:
            S.op("s_cselect_b64 %s, %s, %s" % (sr(s_tb, 2), sr(s_kx, 2), sr(s_tb, 2)))
        S.op("s_cselect_b32 %s, %d, %d" % (sr(s_kb), kb0, kb1))

    def d_enter(S, j):
        S.op("s_lshl_b32 %s, %s, 12" % (sr(s_b), sr(s_w)))
        S.op("s_add_u32 %s, %s, %d" % (sr(s_lim), sr(s_b), 5 * DS))
        S.op("s_add_u32 %s, %s, %d" % (sr(s_wr), sr(s_b), ((3 + j) % 5) * DS))
        d_table(S, A0_, A1_, A1_, 0, j)

    def interval(S, t, groups, region=None, cut=True):
        if cut:
            S.cut(region)
        if FINE or (t & 1):
            S.wait(*need(t))
            S.op("s_barrier")
        S.add(groups)

    def xfrag_rowmajor(S, bX0, bX1):
        S.op("v_and_b32 %s, 15, v1" % vr(t0))
        S.op("v_lshrrev_b32 %s, 4, v1" % vr(t1))
        S.op("v_lshrrev_b32 %s, 1, %s" % (vr(t2), vr(t0)))
        S.op("v_xor_b32 %s, %s, %s" % (vr(t2), vr(t2), vr(t1)))
        S.op("v_lshlrev_b32 %s, 4, %s" % (vr(t2), vr(t2)))
        S.op("v_lshl_add_u32 %s, %s, 7, %s" % (vr(t2), vr(t0), vr(t2)))
        S.op("s_lshl_b32 %s, %s, 13" % (sr(s_t), sr(s_wm)))
        S.op("v_add_u32 %s, %s, %s" % (vr(bX0), sr(s_t), vr(t2)))
        S.op("v_xor_b32 %s, 64, %s" % (vr(bX1), vr(bX0)))

    def wfrag256(S, bW):
        S.op("v_lshrrev_b32 %s, 4, v1" % vr(t1))
        S.op("v_bfe_u32 %s, v1, 2, 2" % vr(t0))
        S.op("v_lshl_add_u32 %s, %s, 3, %s" % (vr(t2), vr(t1), vr(t0)))
        S.op("v_lshlrev_b32 %s, 8, %s" % (vr(t2), vr(t2)))
        S.op("v_and_b32 %s, 3, v1" % vr(t3))
        S.op("v_lshl_add_u32 %s, %s, 3, %s" % (vr(t2), vr(t3), vr(t2)))
        S.op("v_add_u32 %s, 16384, %s" % (vr(t2), vr(t2)))
        S.op("v_and_b32 %s, 1, %s" % (vr(t1), vr(t1)))
        S.op("v_lshl_or_b32 %s, %s, 2, %s" % (vr(t0), vr(t1), vr(t0)))
        S.op("s_lshl_b32 %s, %s, 2" % (sr(s_t), sr(s_wn)))
        S.op("v_xor_b32 %s, %s, %s" % (vr(t0), sr(s_t), vr(t0)))
        for tau in range(4):
            S.op("v_xor_b32 %s, %d, %s" % (vr(t1), tau, vr(t0)))
            S.op("v_lshl_add_u32 %s, %s, 5, %s" % (vr(bW[tau]), vr(t1), vr(t2)))

    def g_rsetup(cX, bX0, bX1, cW, bW):
        def rsetup(step):
            if step & 1:
                return ["v_add_u32 %s, %s, %s" % (vr(cX), sr(s_rd), vr(bX1))] + ring_adv(s_rd, SLOT, ("imm", 3 * SLOT), ("imm", 0))
            return ["v_add_u32 %s, %s, %s" % (vr(cX), sr(s_rd), vr(bX0))] + \
                   ["v_add_u32 %s, %s, %s" % (vr(c), sr(s_rd), vr(b)) for c, b in zip(cW, bW)]
        return rsetup

    def lane_chunk(S, dst):
        S.op("v_and_b32 %s, 15, v1" % vr(t0))
        S.op("v_lshlrev_b32 %s, 4, %s" % (vr(t0), vr(t0)))
        S.op("v_bfe_u32 %s, v1, 4, 1" % vr(t1))
        S.op("v_lshl_add_u32 %s, %s, 9, %s" % (vr(t0), vr(t1), vr(t0)))
        S.op("v_lshrrev_b32 %s, 5, v1" % vr(t1))
        S.op("v_lshl_add_u32 %s, %s, 8, %s" % (vr(dst), vr(t1), vr(t0)))

    def pf_groups(sp, a, b, vpf, vpd, force=False):
        out = []
        if "gdnopf" in DBG and not force:
            return out
        for o in range(a, b, 2 * MB):
            R = Rec()
            prefetch(R, sp, o, min(b, o + 2 * MB), 2 * MB, vpf, vpd, sPF, s_t)
            if R.l:
                out.append(R.l)
        return out

    P = Stream(L + "_P", s_cnt)
    acc = 8
    fr = 136
    TA = Task()
    TA.set_stride = 48
    TA.fill_frac = opt("GA_FILL", 0.8)
    TA.stamps = (1, 4)
    TA.fine = FINE
    xf = [fr + 4 * i for i in range(4)]
    wf = [fr + 16 + 4 * i for i in range(8)]
    cX, bX0, bX1 = 232, 233, 234
    cW = [235, 236, 237, 238]
    bW = [239, 240, 241, 242]
    vpf, vpd = 243, 244
    TA.reads = []
    for kind, i in [("x", 0), ("w", 0), ("w", 1), ("w", 2), ("w", 3), ("w", 4), ("w", 5), ("w", 6), ("w", 7), ("x", 1), ("x", 2), ("x", 3)]:
        if kind == "x":
            TA.reads.append(("b128", xf[i], cX, 2048 * i, 0))
        else:
            for t in range(2):
                TA.reads.append(("tr", wf[i] + 2 * t, cW[i & 3], 1024 * t + 16384 * (i >> 2), 8192))
    TA.mfma = [(acc + 4 * (mt * 8 + j), wf[j], xf[mt]) for mt in range(4) for j in range(8)]
    TA.rsetup = g_rsetup(cX, bX0, bX1, cW, bW)
    P.op("s_lshr_b32 %s, %s, 1" % (sr(s_wm), sr(s_w)))
    P.op("s_and_b32 %s, %s, 1" % (sr(s_wn), sr(s_w)))
    P.op("s_mov_b32 %s, 0" % sr(s_rd))
    P.op("s_lshl_b32 %s, %s, 11" % (sr(s_b), sr(s_w)))
    xfrag_rowmajor(P, bX0, bX1)
    wfrag256(P, bW)
    d_map(P)
    P.op("s_lshl_b32 %s, s2, 8" % sr(s_t))
    P.op("v_add_lshl_u32 %s, v0, %s, 5" % (vr(vpf), sr(s_t)))
    P.op("s_mov_b32 %s, 0xbfb8aa3b" % sr(s_c))
    P.op("s_mov_b32 %s, 0xbfb8aa3b" % sr(s_c + 1))
    P.op("s_waitcnt lgkmcnt(0)")
    srd(P, sX, 8, WS_H2, XP_BYTES)
    srd(P, sG, 4, 0, FF_BYTES)
    srd(P, sU, 6, 0, FF_BYTES)
    srd(P, sH, 8, WS_HH, HHF_BYTES)
    srd(P, sW2, 10, 0, FF_BYTES)
    srd(P, sF, 8, WS_FLAG, 4096 + 8192)
    srd(P, sM, 8, WS_MOD, 6 * D * 4)
    srd(P, sP, 8, WS_PART, 128 * 65536)
    P.op("s_load_dwordx2 s[%d:%d], s[0:1], %d" % (sO, sO + 1, KA_OUT))
    P.op("s_mov_b32 s%d, 0x%x" % (sO + 2, ACT_BYTES))
    P.op("s_mov_b32 s%d, 0x20000" % (sO + 3))
    P.op("s_cmp_eq_u32 %s, 0" % sr(s_ks))
    P.op("s_cselect_b32 s%d, 0, s%d" % (sM + 2, sM + 2))
    P.add(TA.rsetup(0))
    P.op("s_waitcnt lgkmcnt(0)")
    PC, PL = opt("PRIO_C", 2), opt("PRIO_L", 0)
    P.op("s_setprio %d" % PC)
    P.op("s_barrier")
    ex = {}
    b = 0
    for g1, g3 in zip(pf_groups(4, PF_FF[1], FF_BYTES, vpf, vpd), pf_groups(6, PF_FF[1], FF_BYTES, vpf, vpd)):
        ex[b] = [g1]
        ex[b + 1] = [g3]
        b += 2
    compute(P, TA, 0, 16, extras=ex)
    P.op("s_setprio %d" % PL)
    vX = [184, 185, 186, 187]
    vWB = [188, 189]
    vXD = [192, 193]
    vWD = [194, 195, 196, 197]
    vHO, vFO, vFl = 198, 199, 245
    x_voff(P, vX)
    wb_voff(P, vWB)
    if WIDE:
        idle_srds(P)
    P.op("s_add_u32 %s, %s, %d" % (sr(s_lim), sr(s_b), 3 * SLOT))
    P.op("s_add_u32 %s, %s, %d" % (sr(s_wr), sr(s_b), (19 % 3) * SLOT))
    g_class(P, GB_PER)
    ktable(P, s_tb, s_cls, 16, GB_PER, GB_LEAD, 3, GB_REV)
    def wide_chunks(S, s_tile_, idle):
        lane_chunk(S, vHO)
        S.op("s_lshr_b32 %s, %s, 4" % (sr(s_t), sr(s_m0)))
        S.op("s_lshl_b32 %s, %s, 2" % (sr(s_t2), sr(s_wm)))
        S.op("s_add_u32 %s, %s, %s" % (sr(s_t), sr(s_t), sr(s_t2)))
        S.op("s_mul_i32 %s, %s, %d" % (sr(s_t), sr(s_t), HH_RB))
        S.op("s_lshl_b32 %s, %s, 12" % (sr(s_t2), sr(s_tile_)))
        S.op("s_add_u32 %s, %s, %s" % (sr(s_t), sr(s_t), sr(s_t2)))
        S.op("s_lshl_b32 %s, %s, 11" % (sr(s_t2), sr(s_wn)))
        S.op("s_add_u32 %s, %s, %s" % (sr(s_t), sr(s_t), sr(s_t2)))
        if idle:
            S.op("s_cmp_ge_u32 s2, 192")
            S.op("s_cselect_b32 %s, 0x80000000, %s" % (sr(s_t), sr(s_t)))
        S.op("v_add_u32 %s, %s, %s" % (vr(vHO), sr(s_t), vr(vHO)))
        chunks = []
        for mt in range(4):
            for p in range(2):
                q = 2 * mt + p
                a = 8 + 4 * (mt * 8 + 2 * p)
                pk = 200 + 4 * (q & 3)
                c = swiglu_chunk(a, a + 4, a + 16, a + 20, 216 + 8 * (q & 1), pk, s_c,
                                 ent("buffer_store_dwordx4 %s, %s, %s, 0 offen offset:%d sc1" % (vr(pk, 4), vr(vHO), sr(sH, 4), 1024 * p), "hh"))
                if p == 1 and mt < 3:
                    c.append(["v_add_u32 %s, %d, %s ; late" % (vr(vHO), HH_RB, vr(vHO))])
                chunks.append(c)
        return chunks
    chunks = wide_chunks(P, s_nt, False)
    WK = Work(chunks, opt("GA_VPD", 4.0))
    P.add(WK.take(opt("GA_PRE", 20)))
    i_last = 0
    flagged = False
    for i in range(27):
        t = 32 + i
        g = dma_g(t, vX, None, vWB)
        if WK.l and g:
            i_last = i
        g = WK.mix(g)
        if i == 25:
            g = [[ent("buffer_load_dword %s, %s, %s, %s offen sc1" % (vr(vFl), vr(vFO), sr(sF, 4), sr(s_t2)), "poll")]] + g
        interval(P, t, g, cut=not (i & 1))
        if not WK.l and not flagged and i == i_last + opt("GA_FD", 2):
            flagged = True
            P.op("s_lshl_b32 %s, %s, 1" % (sr(s_t), sr(s_m0)))
            P.op("s_lshl_b32 %s, %s, 4" % (sr(s_t2), sr(s_nt)))
            P.op("s_add_u32 %s, %s, %s" % (sr(s_t), sr(s_t), sr(s_t2)))
            P.op("s_lshl_b32 %s, %s, 2" % (sr(s_t2), sr(s_w)))
            P.op("s_add_u32 %s, %s, %s" % (sr(s_t), sr(s_t), sr(s_t2)))
            P.op("v_mov_b32 %s, 4096" % vr(vFO))
            P.wait("hh")
            flag_store(P, t0, vFO, sF, s_t, None)
            d_voff(P, vXD, vWD)
            P.op("v_lshlrev_b32 %s, 2, v1" % vr(vFO))
            P.op("s_lshl_b32 %s, %s, 8" % (sr(s_t2), sr(s_dm)))
            P.op("s_add_u32 %s, %s, 4096" % (sr(s_t2), sr(s_t2)))
            assert i < 25
    accD, frD = 8, 72
    TD = Task()
    TD.set_stride = 32
    TD.fill_frac = opt("DN_FILL", 0.75)
    TD.stamps = (5, 2)
    TD.fine = False
    xf = [frD + 4 * i for i in range(4)]
    wf = [frD + 16 + 4 * i for i in range(4)]
    TD.reads = []
    for kind, i in [("x", 0), ("w", 0), ("w", 1), ("x", 1), ("w", 2), ("w", 3), ("x", 2), ("x", 3)]:
        if kind == "x":
            TD.reads.append(("b128", xf[i], cX, 2048 * i, 1024))
        else:
            for t in range(2):
                TD.reads.append(("tr", wf[i] + 2 * t, cW[i], 1024 * t, 8192))
    TD.mfma = [(accD + 4 * (mt * 4 + tau), wf[tau], xf[mt]) for mt in range(4) for tau in range(4)]

    def d_rsetup(step):
        if step & 1:
            return ring_adv(s_rd, DS, ("imm", 5 * DS), ("imm", 0))
        return ["v_add_u32 %s, %s, %s" % (vr(cX), sr(s_rd), vr(bX0))] + \
               ["v_add_u32 %s, %s, %s" % (vr(c), sr(s_rd), vr(b)) for c, b in zip(cW, bW)]
    TD.rsetup = d_rsetup
    assert flagged
    interval(P, 59, [])
    poll_check(P, L + "_pa", vFl, vFO, sF, s_t2)
    d_enter(P, 0)
    P.add(dma_d(0, vXD, vWD) + dma_d(1, vXD, vWD))
    res, gt = 136, 168
    vRO, vGO, vPO, vFD = 184, 185, 186, 187
    P.op("s_lshl_b32 %s, %s, 13" % (sr(s_t), sr(s_wm)))
    P.op("v_lshl_add_u32 %s, v1, 4, %s" % (vr(bX0), sr(s_t)))
    P.op("v_and_b32 %s, 15, v1" % vr(t0))
    P.op("s_lshl_b32 %s, %s, 6" % (sr(s_t), sr(s_wm)))
    P.op("s_lshl_b32 %s, %s, 7" % (sr(s_t2), sr(s_dm)))
    P.op("s_add_u32 %s, %s, %s" % (sr(s_t), sr(s_t), sr(s_t2)))
    P.op("v_add_u32 %s, %s, %s" % (vr(t0), sr(s_t), vr(t0)))
    P.op("v_lshlrev_b32 %s, 11, %s" % (vr(t0), vr(t0)))
    P.op("v_bfe_u32 %s, v1, 4, 1" % vr(t1))
    P.op("v_lshlrev_b32 %s, 4, %s" % (vr(t1), vr(t1)))
    P.op("v_bfe_u32 %s, v1, 5, 1" % vr(t2))
    P.op("v_lshl_or_b32 %s, %s, 3, %s" % (vr(t1), vr(t2), vr(t1)))
    P.op("s_lshl_b32 %s, %s, 6" % (sr(s_t), sr(s_wn)))
    P.op("s_lshl_b32 %s, %s, 7" % (sr(s_t2), sr(s_dn)))
    P.op("s_add_u32 %s, %s, %s" % (sr(s_t), sr(s_t), sr(s_t2)))
    P.op("v_add_u32 %s, %s, %s" % (vr(t1), sr(s_t), vr(t1)))
    P.op("v_lshl_add_u32 %s, %s, 1, %s" % (vr(vRO), vr(t1), vr(t0)))
    P.op("v_lshlrev_b32 %s, 2, %s" % (vr(vGO), vr(t1)))
    P.op("s_lshl_b32 %s, %s, 2" % (sr(s_t), sr(s_tile)))
    P.op("s_add_u32 %s, %s, %s" % (sr(s_t), sr(s_t), sr(s_w)))
    P.op("s_lshl_b32 %s, %s, 14" % (sr(s_t2), sr(s_t)))
    P.op("v_lshl_add_u32 %s, v1, 4, %s" % (vr(vPO), sr(s_t2)))
    P.op("s_lshl_b32 %s, %s, 2" % (sr(s_t2), sr(s_t)))
    P.op("v_mov_b32 %s, %s" % (vr(vFD), sr(s_t2)))
    P.op("s_mul_i32 %s, %s, %d" % (sr(s_e1), sr(s_ks), A1_ + B1_ - ND))
    P.op("s_mov_b32 %s, %d" % (sr(s_rd), 3 * DS))
    interval(P, 60, [])
    interval(P, 61, dma_d(2, vXD, vWD))
    P.add(TD.rsetup(0))
    sj = [12, 13, 14, 15]
    sq = [16, 17]
    for j in range(4):
        P.op("s_mov_b32 s%d, 0x%x" % (sj[j], 0x8000 * j))
    for j in range(2):
        P.op("s_mov_b32 s%d, 0x%x" % (sq[j], 0x1000 * j))
    interval(P, 62, [])
    interval(P, 63, [])
    P.op("s_setprio %d" % PC)
    ex = {}
    G = []
    for j in range(4):
        for p in range(2):
            G.append(["buffer_load_dwordx4 %s, %s, %s, s%d offen offset:%d" % (vr(res + 8 * j + 4 * p, 4), vr(vRO), sr(sR, 4), sj[j], 64 * p)])
    G.append(["s_movk_i32 %s, %d" % (sr(s_t), 5 * 4096)] +
             ["buffer_load_dwordx4 %s, %s, %s, %s offen offset:%d" % (vr(gt + 4 * q, 4), vr(vGO), sr(sM, 4), sr(s_t), 128 * (q >> 1) + 16 * (q & 1))
              for q in range(4)])
    ex[2 * (ND - 5) + 1] = G
    ex[2 * ND - opt("DN_EARLY", 3)] = [["buffer_load_dword %s, %s, %s, 0 offen sc1" % (vr(vFl), vr(vFD), sr(sF, 4))]]
    P.dyn["D"] = s_e1
    R = Rec()
    srd(R, sR, 8, WS_X1, ACT_BYTES)
    R.op("s_cmp_eq_u32 %s, 0" % sr(s_ks))
    R.op("s_cselect_b32 s%d, 0, s%d" % (sR + 2, sR + 2))
    compute(P, TD, 32, ND, entry=dma_d(3, vXD, vWD) + [R.l], extras=ex, region="D", last_bar=False)
    P.emit(A)
    A.op("s_mov_b32 s3, 0x%x" % SPIN_MAX)
    A.op("s_cmp_lg_u32 %s, 0" % sr(s_ks))
    A.op("s_cbranch_scc1 %s_A" % L)
    acc, fr = accD, frD
    for q in range(8):
        for d in range(4):
            A.op("v_cvt_pk_bf16_f32 %s, %s, %s" % (vr(fr + 4 * q + d), vr(acc + 8 * q + 2 * d), vr(acc + 8 * q + 2 * d + 1)))
        A.op("buffer_store_dwordx4 %s, %s, %s, s%d offen offset:%d sc1" % (vr(fr + 4 * q, 4), vr(vPO), sr(sP, 4), sq[q >> 2], 1024 * (q & 3)))
    A.op("v_mov_b32 %s, 1" % vr(t0))
    A.op("s_waitcnt vmcnt(0)")
    A.op("s_mov_b64 exec, 1")
    A.op("buffer_store_dword %s, %s, %s, 0 offen sc1" % (vr(t0), vr(vFD), sr(sF, 4)))
    A.op("s_branch %s_fin" % L)
    A.label(L + "_poll")
    A.op("s_sub_u32 s3, s3, 1")
    A.op("s_cbranch_scc1 %s_got" % L)
    A.op("s_sleep 1")
    A.op("buffer_load_dword %s, %s, %s, 0 offen sc1" % (vr(vFl), vr(vFD), sr(sF, 4)))
    A.label(L + "_A")
    A.op("s_waitcnt vmcnt(0)")
    A.op("v_readfirstlane_b32 %s, %s" % (sr(s_t), vr(vFl)))
    A.op("s_cmp_lg_u32 %s, 1" % sr(s_t))
    A.op("s_cbranch_scc1 %s_poll" % L)
    A.label(L + "_got")
    A.op("s_nop 7")
    for q in range(8):
        A.op("buffer_load_dwordx4 %s, %s, %s, s%d offen offset:%d sc1" % (vr(fr + 4 * q, 4), vr(vPO), sr(sP, 4), sq[q >> 2], 1024 * (q & 3)))
    rf = 200
    for j in range(4):
        for p in range(2):
            q0 = 4 * j + 2 * p
            a0, a1 = acc + 4 * q0, acc + 4 * q0 + 4
            A.op("s_waitcnt vmcnt(7)")
            pq = fr + 4 * (2 * j + p)
            up = fr + 32 + 8 * ((2 * j + p) & 3)
            for d in range(4):
                unpack(A, up + 2 * d, up + 2 * d + 1, pq + d)
            for x in range(0, 8, 2):
                A.op("v_pk_add_f32 %s, %s, %s" % (vr(a0 + x, 2), vr(a0 + x, 2), vr(up + x, 2)))
            rr = res + 8 * j + 4 * p
            for d in range(4):
                unpack(A, rf + 2 * d, rf + 2 * d + 1, rr + d)
            for r in range(4):
                A.op("v_permlane16_swap_b32 %s, %s" % (vr(a0 + r), vr(a1 + r)))
            for x in range(0, 8, 2):
                A.op("v_pk_fma_f32 %s, %s, %s, %s" % (vr(rf + x, 2), vr(a0 + x, 2), vr(gt + 8 * p + x, 2), vr(rf + x, 2)))
            for d in range(4):
                A.op("v_cvt_pk_bf16_f32 %s, %s, %s" % (vr(rr + d), vr(rf + 2 * d), vr(rf + 2 * d + 1)))
            A.op("buffer_store_dwordx4 %s, %s, %s, s%d offen offset:%d" % (vr(rr, 4), vr(vRO), sr(sO, 4), sj[j], 64 * p))
    A.op("s_branch %s_fin" % L)

    A.label(L + "_Q")
    A.hist = []
    Q = Stream(L + "_Q", s_cnt)
    vWA = [200, 201]
    Q.op("s_setprio %d" % PL)
    Q.op("s_sub_u32 %s, %s, 4" % (sr(s_w), sr(s_w)))
    Q.op("s_lshl_b32 %s, %s, 11" % (sr(s_b), sr(s_w)))
    Q.op("s_add_u32 %s, %s, %d" % (sr(s_lim), sr(s_b), 3 * SLOT))
    Q.op("s_mov_b32 %s, %s" % (sr(s_wr), sr(s_b)))
    g_class(Q, GA_PER)
    ktable(Q, s_tb, s_cls, 16, GA_PER, GA_LEAD, t0=opt("GA_T0", 1))
    Q.op("s_lshl_b32 %s, %s, 8" % (sr(s_t2), sr(s_nt)))
    w256h_voff(Q, vWA, 7168, s_t2)
    x_voff(Q, vX)
    Q.op("s_waitcnt lgkmcnt(0)")
    srd(Q, sG, 4, 0, FF_BYTES)
    srd(Q, sU, 6, 0, FF_BYTES)
    srd(Q, sX, 8, WS_H2, XP_BYTES)
    for t in range(-6, 0):
        Q.add(dma_g(t, vX, vWA, vWB))
    acc, fr = 8, 104
    TB = Task()
    TB.set_stride = 40
    TB.fill_frac = opt("GB_FILL", 0.8)
    TB.stamps = (1, 2)
    TB.fine = FINE
    xf = [fr + 4 * i for i in range(4)]
    wf = [fr + 16 + 4 * i for i in range(6)]
    cW3, bW3 = cW[:3], bW[:3]
    TB.reads = []
    for kind, i in [("x", 0), ("w", 0), ("w", 1), ("w", 2), ("w", 3), ("w", 4), ("w", 5), ("x", 1), ("x", 2), ("x", 3)]:
        if kind == "x":
            TB.reads.append(("b128", xf[i], cX, 2048 * i, 0))
        else:
            for t in range(2):
                TB.reads.append(("tr", wf[i] + 2 * t, cW3[i % 3], 1024 * t + 16384 * (i // 3), 8192))
    TB.mfma = [(acc + 4 * (mt * 6 + j), wf[j], xf[mt]) for mt in range(4) for j in range(6)]
    TB.rsetup = g_rsetup(cX, bX0, bX1, cW3, bW3)
    if WIDE:
        TB.set_stride, TB.reads, TB.mfma, TB.rsetup, TB.fill_frac = TA.set_stride, TA.reads, TA.mfma, TA.rsetup, TA.fill_frac
    Q.op("s_lshr_b32 %s, %s, 1" % (sr(s_wm), sr(s_w)))
    Q.op("s_and_b32 %s, %s, 1" % (sr(s_wn), sr(s_w)))
    Q.op("s_mov_b32 %s, %d" % (sr(s_rd), (16 % 3) * SLOT))
    wb_voff(Q, vWB)
    xfrag_rowmajor(Q, bX0, bX1)
    Q.op("v_lshrrev_b32 %s, 4, v1" % vr(t1))
    Q.op("v_bfe_u32 %s, v1, 2, 2" % vr(t0))
    Q.op("v_mul_u32_u24 %s, 0xc0, %s" % (vr(t0), vr(t0)))
    Q.op("v_lshl_add_u32 %s, %s, 11, %s" % (vr(t0), vr(t1), vr(t0)))
    Q.op("v_and_b32 %s, 3, v1" % vr(t2))
    Q.op("v_lshl_add_u32 %s, %s, 3, %s" % (vr(t0), vr(t2), vr(t0)))
    Q.op("v_add_u32 %s, 16384, %s" % (vr(t0), vr(t0)))
    Q.op("v_and_b32 %s, 1, %s" % (vr(t1), vr(t1)))
    Q.op("s_cmp_eq_u32 %s, 0" % sr(s_wn))
    for j in range(3):
        Q.op("s_cselect_b32 %s, %d, %d" % (sr(s_t), (0, 1, 2)[j], (4, 5, 3)[j]))
        Q.op("v_xor_b32 %s, %s, %s" % (vr(t2), sr(s_t), vr(t1)))
        Q.op("v_lshl_add_u32 %s, %s, 5, %s" % (vr(bW3[j]), vr(t2), vr(t0)))
    if WIDE:
        wfrag256(Q, bW)
    d_map(Q)
    VD = [246, 247, 248, 249, 250, 251]
    vXD, vWD = VD[:2], VD[2:]
    d_voff(Q, vXD, vWD)
    srd(Q, sH, 8, WS_HH, HHF_BYTES)
    srd(Q, sW2, 10, 0, FF_BYTES)
    srd(Q, sF, 8, WS_FLAG, 4096 + 8192)
    Q.op("s_mov_b32 %s, 0xbfb8aa3b" % sr(s_c))
    Q.op("s_mov_b32 %s, 0xbfb8aa3b" % sr(s_c + 1))
    Q.op("v_and_b32 %s, 255, v0" % vr(t0))
    Q.op("s_lshl_b32 %s, s2, 8" % sr(s_t))
    if WIDE:
        Q.op("s_sub_u32 %s, %s, %d" % (sr(s_t), sr(s_t), 192 * 256))
        Q.op("v_add_lshl_u32 %s, %s, %s, 7" % (vr(vpf), vr(t0), sr(s_t)))
        Q.op("s_cmp_ge_u32 s2, 192")
        Q.op("s_cselect_b32 %s, 0, 0x80000000" % sr(s_t))
        Q.op("v_and_b32 %s, 0x7fffffff, %s" % (vr(vpf), vr(vpf)))
        Q.op("v_or_b32 %s, %s, %s" % (vr(vpf), sr(s_t), vr(vpf)))
        Q.op("v_min_u32 %s, %s, %s" % (vr(vpf), "0x80000000", vr(vpf)))
    else:
        Q.op("v_add_lshl_u32 %s, %s, %s, 5" % (vr(vpf), vr(t0), sr(s_t)))
    vHS = 204
    lane_chunk(Q, vHO)
    Q.op("s_lshr_b32 %s, %s, 4" % (sr(s_t), sr(s_m0)))
    Q.op("s_lshl_b32 %s, %s, 2" % (sr(s_t2), sr(s_wm)))
    Q.op("s_add_u32 %s, %s, %s" % (sr(s_t), sr(s_t), sr(s_t2)))
    Q.op("s_mul_i32 %s, %s, %d" % (sr(s_t), sr(s_t), HH_RB))
    Q.op("s_mul_i32 %s, %s, 3072" % (sr(s_t2), sr(s_nt)))
    Q.op("s_add_u32 %s, %s, %s" % (sr(s_t), sr(s_t), sr(s_t2)))
    Q.op("s_add_u32 %s, %s, 65536" % (sr(s_t), sr(s_t)))
    Q.op("s_lshl_b32 %s, %s, 11" % (sr(s_t2), sr(s_wn)))
    Q.op("s_add_u32 %s, %s, %s" % (sr(s_t2), sr(s_t), sr(s_t2)))
    Q.op("v_add_u32 %s, %s, %s" % (vr(vHO), sr(s_t2), vr(vHO)))
    Q.op("s_lshl_b32 %s, %s, 9" % (sr(s_t2), sr(s_wn)))
    Q.op("s_add_u32 %s, %s, %s" % (sr(s_t), sr(s_t), sr(s_t2)))
    Q.op("s_add_u32 %s, %s, 1024" % (sr(s_t), sr(s_t)))
    Q.op("v_and_b32 %s, 15, v1" % vr(t0))
    Q.op("v_lshl_add_u32 %s, %s, 4, %s" % (vr(t0), vr(t0), sr(s_t)))
    Q.op("v_lshrrev_b32 %s, 5, v1" % vr(t1))
    Q.op("v_lshl_add_u32 %s, %s, 8, %s" % (vr(t0), vr(t1), vr(t0)))
    Q.op("v_bfe_u32 %s, v1, 4, 1" % vr(t1))
    Q.op("s_mov_b32 %s, %d" % (sr(s_t), HH_RB))
    Q.op("v_mad_u32_u24 %s, %s, %s, %s" % (vr(vHS), vr(t1), sr(s_t), vr(t0)))
    Q.add(TB.rsetup(0))
    interval(Q, -1, [])
    for t in range(31):
        interval(Q, t, dma_g(t, vX, vWA, vWB), cut=not (t & 1))
    interval(Q, 31, [])
    ex = {}
    b = opt("PF_W2", 8)
    for g in pf_groups(10, 0, FF_BYTES, vpf, vpd, WIDE):
        ex.setdefault(b, []).append(g)
        b += opt("PF_W2STEP", 2)
    ent_ = dma_g(31, vX, vWA, vWB)
    ent_ = ent_ + [["s_setprio %d" % PC]]
    compute(Q, TB, 16, 16, entry=ent_, extras=ex)
    Q.op("s_setprio %d" % PL)
    d_enter(Q, 4)
    chunks = []
    for mp in range(2):
        for u in range(3):
            q = 3 * mp + u
            pk = fr + 4 * (q & 3)
            e = fr + 16 + 8 * (q & 1)
            if u < 2:
                mt = 2 * mp + u
                a = acc + 4 * (mt * 6)
                c = swiglu_chunk(a, a + 4, a + 12, a + 16, e, pk, s_c,
                                 ent("buffer_store_dwordx4 %s, %s, %s, 0 offen sc1" % (vr(pk, 4), vr(vHO), sr(sH, 4)), "hh"))
                c.append(["v_add_u32 %s, %d, %s ; late" % (vr(vHO), HH_RB, vr(vHO))])
            else:
                a = acc + 4 * (2 * mp * 6 + 2)
                c = swiglu_chunk(a, a + 24, a + 12, a + 36, e, pk, s_c,
                                 ent("buffer_store_dwordx4 %s, %s, %s, 0 offen sc1" % (vr(pk, 4), vr(vHS), sr(sH, 4)), "hh"))
                c.append(["v_add_u32 %s, %d, %s ; late" % (vr(vHS), 2 * HH_RB, vr(vHS))])
            chunks.append(c)
    if WIDE:
        nb_calc(Q)
        chunks = wide_chunks(Q, 3, True)
    WK = Work(chunks, opt("GB_VPD", 7.0 if WIDE else 5.5))
    Q.add(WK.mix(dma_d(4, vXD, vWD)))
    Q.op("s_mul_i32 %s, %s, %d" % (sr(s_e1), sr(s_ks), A1_ - A0_))
    Q.op("s_mul_i32 %s, %s, %d" % (sr(s_e2), sr(s_ks), B1_ - B0_))
    Q.dyn_wait = {"D1": 24, "D2": 24}
    if A1_ > A0_:
        Q.dyn["D1"] = s_e1
    if B1_ > B0_:
        Q.dyn["D2"] = s_e2
    i_last = 0
    flagged = False
    for i in range(ND - 1):
        j = i + 5
        g = dma_d(j, vXD, vWD) if j < ND else []
        if WK.l:
            i_last = i
        if j == A0_ - 1:
            assert flagged
            g = [[ent("buffer_load_dword %s, %s, %s, %s offen sc1" % (vr(vFl), vr(vFO), sr(sF, 4), sr(s_t2)), "poll")]] + g
        if j == A0_:
            interval(Q, 65 + 2 * i, [])
            poll_check(Q, L + "_pb", vFl, vFO, sF, s_t2)
            stampx(Q, 5)
            d_table(Q, B0_, B1_, 32 + B1_, 32, 0)
            Q.add(g)
        else:
            interval(Q, 65 + 2 * i, WK.mix(g), region="D1" if j < A0_ else "D2")
        if not WK.l and not flagged and i == i_last + opt("GB_FD", 1):
            flagged = True
            Q.op("s_lshl_b32 %s, %s, 1" % (sr(s_t), sr(s_m0)))
            Q.op("s_lshl_b32 %s, %s, 4" % (sr(s_t2), sr(s_nt)))
            Q.op("s_add_u32 %s, %s, %s" % (sr(s_t), sr(s_t), sr(s_t2)))
            Q.op("s_lshl_b32 %s, %s, 2" % (sr(s_t2), sr(s_w)))
            Q.op("s_add_u32 %s, %s, %s" % (sr(s_t), sr(s_t), sr(s_t2)))
            Q.op("v_mov_b32 %s, 8192" % vr(vFO))
            Q.wait("hh")
            flag_store(Q, t0, vFO, sF, s_t, None)
            stampx(Q, 4)
            Q.op("v_lshlrev_b32 %s, 2, v1" % vr(vFO))
            Q.op("s_lshl_b32 %s, %s, 8" % (sr(s_t2), sr(s_dm)))
            Q.op("s_add_u32 %s, %s, 8192" % (sr(s_t2), sr(s_t2)))
    Q.emit(A)
    assert P.nbar() == Q.nbar(), (P.nbar(), Q.nbar())
    A.label(L + "_fin")
    end_kernel2(A, L, 256, 512, 163840, 252, 80)


def main():
    A = Asm()
    k_front(A)
    k_mod1(A)
    k_qkv3(A)
    k_proj3(A, "wo_kernel", D, WS_O, XS, KA_WO, True)
    k_ln2(A)
    if "touchw2" in DBG:
        k_touch(A, "touchw_kernel", "w2")
    k_gd(A)
    dst = sys.argv[1] if len(sys.argv) > 1 else os.path.join(os.path.dirname(os.path.abspath(__file__)), "..", NAME + ".s")
    finish(A, dst)


if __name__ == "__main__":
    main()
```
